```python
import torch

def _softmax(x, axis=-1):
    return torch.softmax(x, dim=axis)

def _gelu(x):
    return torch.nn.functional.gelu(x, approximate='tanh')

def _silu(x):
    return torch.nn.functional.silu(x)

def _sigmoid(x):
    return torch.sigmoid(x)

def _layernorm(x, axis=-1, eps=1e-05):
    m = x.mean(dim=axis, keepdim=True)
    v = x.var(dim=axis, keepdim=True, unbiased=False)
    return (x - m) / torch.sqrt(v + eps)

def _scatter_add(tgt, idx, src, axis=0):
    return tgt.clone().index_add_(axis, idx, src)

def _segment_sum(src, seg, n):
    out = torch.zeros((n,) + src.shape[1:], dtype=src.dtype)
    return out.index_add_(0, seg, src)

def _pad(x, pw):
    flat = tuple((v for pair in reversed(pw) for v in pair))
    return torch.nn.functional.pad(x, flat)
kernel_name = 'adaLN_cond__sliding_block_cached__glu_gated_bilinear__decode'

def setup_inputs():

    _w = lambda a: (lambda t: t.to(torch.bfloat16) if t.is_floating_point() else t)(torch.as_tensor(a))

    def _A_setup():
        B, Sq, D = (1, 1, 512)
        Hq, Hkv, Sk, Dh = (32, 8, 65536, 128)
        assert Hq % Hkv == 0, (Hq, Hkv)
        return {'x': _w((lambda *s: torch.randn(*s, dtype=torch.bfloat16) * 0.1)(B, Sq, D)), 'k_cache': _w((lambda *s: torch.randn(*s, dtype=torch.bfloat16) * 0.8)(B, Hkv, Sk, Dh)), 'v_cache': _w((lambda *s: torch.randn(*s, dtype=torch.bfloat16) * 3.2)(B, Hkv, Sk, Dh)), 'wq': _w((lambda *s: torch.randn(*s, dtype=torch.bfloat16) * 0.8)(D, Hq * Dh) * D ** (-0.5)), 'wo': _w((lambda *s: torch.randn(*s, dtype=torch.bfloat16) * 3.2)(Hq * Dh, D) * (Hq * Dh) ** (-0.5))}
    _A_in = _A_setup()

    def _B_setup():
        B, S, D, F = (1, 1, 512, 1792)
        return {'x': _w((lambda *s: torch.randn(*s, dtype=torch.bfloat16) * 0.1)(B, S, D)), 'w_gate': _w((lambda *s: torch.randn(*s, dtype=torch.bfloat16) * 3.2)(D, F) * D ** (-0.5)), 'w_up': _w((lambda *s: torch.randn(*s, dtype=torch.bfloat16) * 3.2)(D, F) * D ** (-0.5)), 'w_down': _w((lambda *s: torch.randn(*s, dtype=torch.bfloat16) * 3.2)(F, D) * F ** (-0.5))}
    _B_in = _B_setup()
    return {'A_x': _A_in['x'], 'A_k_cache': _A_in['k_cache'], 'A_v_cache': _A_in['v_cache'], 'A_wq': _A_in['wq'], 'A_wo': _A_in['wo'], 'B_x': _B_in['x'], 'B_w_gate': _B_in['w_gate'], 'B_w_up': _B_in['w_up'], 'B_w_down': _B_in['w_down'], 'c': _w((lambda *s: torch.randn(*s, dtype=torch.bfloat16) * 0.4)(1, 512) * 8.0), 'w_mod': _w((lambda *s: torch.randn(*s, dtype=torch.bfloat16) * 0.4)(512, 6 * 512) * 512 ** (-0.5) * 8.0)}

def reference(A_x, A_k_cache, A_v_cache, A_wq, A_wo, B_x, B_w_gate, B_w_up, B_w_down, c, w_mod):

    def _A_ref(x, k_cache, v_cache, wq, wo):
        B, Sq, D = x.shape
        Hq, Dh = (32, 128)
        Hkv, Sk = (k_cache.shape[1], k_cache.shape[2])
        W = min(4096, max(256, Sk // 4))
        rep = Hq // Hkv
        q = (lambda x, *d: x.permute(*d))((x @ wq).reshape(B, Sq, Hq, Dh), 0, 2, 1, 3)
        k = (lambda x, n, axis: torch.repeat_interleave(x, n, dim=axis))(k_cache[:, :, Sk - W:, :], rep, axis=1)
        v = (lambda x, n, axis: torch.repeat_interleave(x, n, dim=axis))(v_cache[:, :, Sk - W:, :], rep, axis=1)
        scores = torch.einsum('bhqd,bhkd->bhqk', q, k) * Dh ** (-0.5)
        p = _softmax(scores, axis=-1)
        o = torch.einsum('bhqk,bhkd->bhqd', p, v)
        return (lambda x, *d: x.permute(*d))(o, 0, 2, 1, 3).reshape(B, Sq, Hq * Dh) @ wo

    def _B_ref(x, w_gate, w_up, w_down):
        g = torch.einsum('bsd,df->bsf', x, w_gate)
        u = torch.einsum('bsd,df->bsf', x, w_up)
        h = g * u
        return torch.einsum('bsf,fd->bsd', h, w_down)
    x = A_x
    mod = (_silu(c) @ w_mod).reshape(c.shape[0], 6, 1, -1)
    sa, ca, ga, sb, cb, gb = (mod[:, 0].clone(), mod[:, 1].clone(), mod[:, 2].clone(), mod[:, 3].clone(), mod[:, 4].clone(), mod[:, 5].clone())
    h = _layernorm(x, axis=-1) * (1 + ca) + sa
    x = x + ga * _A_ref(h, A_k_cache, A_v_cache, A_wq, A_wo)
    h = _layernorm(x, axis=-1) * (1 + cb) + sb
    x = x + gb * _B_ref(h, B_w_gate, B_w_up, B_w_down)
    return x
```

```python
import re

REG_RE = re.compile(r'(?<![\w.])([vsa])(\d+)(?![\w\[])|(?<![\w.])([vsa])\[(\d+):(\d+)\]|\b(vcc|exec|m0|scc)\b')

def regs_of(tok):
    out = []
    for m in REG_RE.finditer(tok):
        if m.group(1):
            out.append(m.group(1) + m.group(2))
        elif m.group(3):
            out += [m.group(3) + str(i) for i in range(int(m.group(4)), int(m.group(5)) + 1)]
        else:
            out.append(m.group(6))
    return out

TRANS = ('v_exp_f32', 'v_log_f32', 'v_rcp_f32', 'v_rsq_f32', 'v_sqrt_f32', 'v_sin_f32', 'v_cos_f32')

def split_ops(s):
    ops, depth, cur = [], 0, ''
    for ch in s:
        if ch == '[': depth += 1
        if ch == ']': depth -= 1
        if ch == ',' and depth == 0:
            ops.append(cur.strip()); cur = ''
        else:
            cur += ch
    if cur.strip(): ops.append(cur.strip())
    return ops

class Ins:
    def __init__(self, text):
        self.text = text
        t = text.split(';')[0].strip()
        parts = t.split(None, 1)
        self.mn = parts[0]
        rest = parts[1] if len(parts) > 1 else ''
        self.ops = split_ops(rest)
        mn = self.mn
        self.is_mfma = mn.startswith('v_mfma')
        self.is_valu = mn.startswith('v_') and not self.is_mfma
        self.is_ds = mn.startswith('ds_')
        self.is_vmem = mn.startswith(('global_', 'buffer_', 'flat_'))
        self.is_salu = mn.startswith('s_')
        self.is_dpp = ('_dpp' in mn) or any(k in rest for k in ('quad_perm', 'row_shr', 'row_shl', 'row_ror', 'row_mirror', 'row_half_mirror', 'row_bcast', 'row_newbcast'))
        self.is_perm = mn.startswith(('v_permlane16_swap', 'v_permlane32_swap'))
        self.is_trans = any(mn.startswith(x) for x in TRANS)
        self.is_sdwa = '_sdwa' in mn
        ops = list(self.ops)
        if ops:
            last = ops[-1].split()
            ops[-1] = last[0] if last else ''
        self.cops = ops
        W, R = [], []
        A = B = C = []
        if self.is_mfma:
            W = regs_of(ops[0]); A = regs_of(ops[1]); B = regs_of(ops[2]); C = regs_of(ops[3]); R = A + B + C
        elif self.is_valu:
            if self.is_perm or mn.startswith('v_swap'):
                W = regs_of(ops[0]) + regs_of(ops[1]); R = list(W)
            elif mn.startswith('v_cmp'):
                W = regs_of(ops[0]); R = sum((regs_of(o) for o in ops[1:]), [])
            elif mn.startswith(('v_add_co', 'v_addc_co', 'v_sub_co')):
                W = regs_of(ops[0]) + regs_of(ops[1]); R = sum((regs_of(o) for o in ops[2:]), [])
            elif mn == 'v_nop':
                pass
            else:
                W = regs_of(ops[0]); R = sum((regs_of(o) for o in ops[1:]), [])
                if mn.startswith(('v_fmac', 'v_dot2c', 'v_writelane')) or self.is_dpp:
                    R = R + W
                if mn.startswith('v_cndmask') and len(ops) == 3:
                    R.append('vcc')
        elif self.is_ds:
            if mn.startswith(('ds_read', 'ds_bpermute', 'ds_permute', 'ds_swizzle')):
                W = regs_of(ops[0]); R = sum((regs_of(o) for o in ops[1:]), [])
            else:
                R = sum((regs_of(o) for o in ops), [])
        elif self.is_vmem:
            if '_load' in mn and 'lds' not in mn and 'lds' not in rest.split():
                W = regs_of(ops[0]); R = sum((regs_of(o) for o in ops[1:]), [])
                if 'd16' in mn: R = R + W
            else:
                R = sum((regs_of(o) for o in ops), [])
        elif self.is_salu:
            if mn.startswith(('s_cmp', 's_bitcmp', 's_cbranch', 's_branch', 's_waitcnt', 's_barrier', 's_nop', 's_endpgm', 's_sleep', 's_setprio')):
                R = sum((regs_of(o) for o in ops), [])
            else:
                W = regs_of(ops[0]) if ops else []
                R = sum((regs_of(o) for o in ops[1:]), [])
        self.W, self.R, self.A, self.B, self.C = W, R, A, B, C
        self.dppsrc = regs_of(ops[1]) if (self.is_dpp and self.is_valu) else []
        self.passes = 0
        if self.is_mfma:
            if '16x16x32' in mn or '16x16x16' in mn: self.passes = 4
            elif '32x32x16' in mn or '32x32x8' in mn: self.passes = 8
            elif '4x4x4' in mn: self.passes = 2
            else: raise ValueError(mn)
        self.wide_store = self.is_vmem and ('store_dwordx4' in mn or 'store_dwordx3' in mn)
        self.states = 1
        if mn == 's_nop': self.states = int(ops[0]) + 1

class Asm:
    def __init__(self):
        self.lines = []
        self.pend = []
        self.saved = {}
        self.nnop = 0
    def raw(self, s):
        self.lines.append(s)
    def comment(self, s):
        self.lines.append('    ; ' + s)
    def _need(self, ins):
        need = 0
        for p in self.pend:
            k, regs, age = p['k'], p['r'], p['age']
            req = 0
            Rs, Ws = set(ins.R), set(ins.W)
            if k == 'valu_v':
                if ins.is_mfma and regs & Rs: req = 2
                if ins.is_valu and ins.is_dpp and regs & set(ins.dppsrc): req = max(req, 2)
                if ins.is_perm and regs & Rs: req = max(req, 2)
                if ins.mn.startswith(('v_readlane', 'v_readfirstlane')) and regs & Rs: req = max(req, 1)
            elif k == 'trans':
                if (ins.is_valu or ins.is_mfma) and not ins.is_trans and regs & Rs: req = 1
                if ins.is_trans and regs & Rs: req = 1
            elif k == 'sdwa':
                if ins.is_valu and regs & (Rs | Ws): req = 1
            elif k == 'valu_s':
                if ins.is_valu and regs & Rs: req = 2
                if ins.mn.startswith(('v_readlane', 'v_writelane')) and regs & Rs: req = 4
                if ins.is_vmem and regs & Rs: req = 5
                if ins.is_salu and regs & Rs and not ins.mn.startswith('s_cbranch'): req = max(req, 1)
            elif k == 'mfma':
                ps = p['p']
                far = {2: 5, 4: 8, 8: 12}[ps]
                if ins.is_mfma:
                    if regs & (set(ins.A) | set(ins.B)): req = far
                    if regs & set(ins.C):
                        if set(ins.C) == regs and ins.passes == ps: req = max(req, 2 if ps == 2 else 0)
                        else: req = max(req, {2: 4, 4: 6, 8: 10}[ps])
                    elif regs & Ws:
                        req = max(req, far)
                elif (ins.is_valu and regs & (Rs | Ws)) or ((ins.is_vmem or ins.is_ds) and regs & (Rs | Ws)):
                    req = far
            elif k == 'mfma_c':
                if ins.is_valu and regs & Ws: req = {2: 1, 4: 3, 8: 7}[p['p']]
            elif k == 'wstore':
                if (ins.is_valu or ins.is_mfma) and regs & Ws: req = 2
                elif regs & Ws: req = 1
            elif k == 'm0':
                if ins.is_vmem and 'lds' in ins.text: req = 1
            need = max(need, req - age)
        return need
    def _advance(self, n):
        for p in self.pend: p['age'] += n
        self.pend = [p for p in self.pend if p['age'] < 13]
    def nop(self, n):
        while n > 0:
            k = min(n, 16)
            self.lines.append(f'    s_nop {k-1}')
            self._advance(k); n -= k; self.nnop += 1
    def __call__(self, text):
        for t in text.split('\n'):
            t = t.strip()
            if not t: continue
            if t.startswith(';'):
                self.lines.append('    ' + t); continue
            ins = Ins(t)
            need = self._need(ins)
            if need > 0: self.nop(need)
            self.lines.append('    ' + t)
            self._advance(ins.states)
            if ins.is_mfma:
                self.pend.append(dict(k='mfma', r=set(ins.W), age=0, p=ins.passes))
                if ins.C: self.pend.append(dict(k='mfma_c', r=set(ins.C), age=0, p=ins.passes))
            elif ins.is_valu:
                v = {r for r in ins.W if r[0] in 'va' and r != 'vcc'}
                s = {r for r in ins.W if r[0] == 's' or r == 'vcc'}
                if v:
                    self.pend.append(dict(k='valu_v', r=v, age=0))
                    if ins.is_trans: self.pend.append(dict(k='trans', r=v, age=0))
                    if ins.is_sdwa or 'op_sel' in t: self.pend.append(dict(k='sdwa', r=v, age=0))
                if s: self.pend.append(dict(k='valu_s', r=s, age=0))
            elif ins.wide_store:
                data = regs_of(ins.cops[1]) if ins.mn.startswith('global_') else regs_of(ins.cops[0])
                self.pend.append(dict(k='wstore', r=set(data), age=0))
            elif ins.is_salu and 'm0' in ins.W:
                self.pend.append(dict(k='m0', r={'m0'}, age=0))
            if ins.mn.startswith(('s_cbranch', 's_branch')):
                tgt = ins.ops[0]
                self.saved.setdefault(tgt, []).append([dict(p) for p in self.pend])
                if ins.mn == 's_branch': self.pend = []
            if ins.mn == 's_endpgm': self.pend = []
    def label(self, name):
        for st in self.saved.get(name, []):
            self.pend += [dict(p) for p in st]
        self.lines.append(f'{name}:')
    def loop_label(self, name):
        self.label(name)
    def settle(self):
        worst = 0
        for p in self.pend:
            req = {'valu_v': 2, 'trans': 1, 'sdwa': 1, 'valu_s': 5, 'mfma': 12 if p.get('p') == 8 else 8, 'mfma_c': 7, 'wstore': 2, 'm0': 1}[p['k']]
            worst = max(worst, req - p['age'])
        if worst > 0: self.nop(worst)
    def text(self):
        return '\n'.join(self.lines) + '\n'

class RegAlloc:
    def __init__(self, prefix, start, limit):
        self.prefix, self.next, self.limit, self.hi = prefix, start, limit, start
    def get(self, n=1, align=None):
        if align is None: align = 2 if n >= 2 else 1
        if self.prefix == 's' and n >= 4: align = 4
        while self.next % align: self.next += 1
        r = self.next; self.next += n
        assert self.next <= self.limit, "out of regs"
        self.hi = max(self.hi, self.next)
        return r
    def mark(self): return self.next
    def reset(self, m): self.next = m

def vr(b, n=1):
    return f'v{b}' if n == 1 else f'v[{b}:{b+n-1}]'
def sr(b, n=1):
    return f's{b}' if n == 1 else f's[{b}:{b+n-1}]'
```

```python
import sys
sys.path.insert(0, 'gen')
from asmlib import Asm, RegAlloc, vr, sr

KNAME = 'adaLN_cond__sliding_block_cached__glu_gated_bilinear__decode_kernel'
LOG2E = 0x3fb8aa3b
SCALE = 0x3db504f3
EPS = 0x3727c5ac
DPP = 'row_mask:0xf bank_mask:0xf'

E1, E2, E3, E3ML, E4, E6, E5 = 0x1000, 0x10000, 0x20000, 0x60000, 0x80000, 0x90000, 0xA0000
STAMPS = 0x10000000
SPIN = 200000

L_TR1, L_TR2 = 0, 4096
L_XD = 8192
L_Q = 9216
L_ML = 10240
L_FIN = 10496
L_ST = 11392
L_GU = 11520
L_H2 = 12544
L_BIG = 13824
LDS_BYTES = L_BIG + 49152

def gen(diag=False, code_kb=16):
    a = Asm()
    S = RegAlloc('s', 32, 100)
    V = RegAlloc('v', 1, 256)
    pX, pK, pV, pWQ, pWO, pWG, pWU = 4, 6, 8, 10, 12, 16, 18
    pWD, pC, pWM, pOUT, pWS = 20, 22, 24, 26, 30
    sJ, sY, sW, sT0, sT1, sT2, sT3, sCNT = [S.get() for _ in range(8)]
    sLOG2E, sHI, sFF, sFI = [S.get() for _ in range(4)]
    sUSE = S.get(2); sQ1 = S.get(2); sQ2 = S.get(2); sQ3 = S.get(2); sPC = S.get(2); sM = S.get(2)
    sSTAMP = 68
    nstamp = [0]
    def stamp():
        if diag:
            n = nstamp[0]; nstamp[0] += 1
            assert n < 14
            a(f's_memrealtime s[{sSTAMP+2*n}:{sSTAMP+2*n+1}]')
    def stamp_at(n):
        if diag:
            a(f's_memrealtime s[{sSTAMP+2*n}:{sSTAMP+2*n+1}]')
    vL = V.get(); vRHO = V.get(); vC8 = V.get(); vL16 = V.get(); vT = V.get(); vE = V.get()
    vR = V.get()
    vM = V.get(4)
    vTRW = V.get(); vXW = V.get(); vXR = V.get()
    vPF = V.get(4)
    t0, t1, t2, t3, t4, t5, t6, t7 = [V.get() for _ in range(8)]
    vG = V.get(16)
    vA = V.get(16)
    vD = V.get(4)
    common_mark = V.mark()

    def rb(dst, src):
        a(f'v_cvt_pk_bf16_f32 v{dst}, v{src}, v{src}')
        a(f'v_and_b32 v{dst}, {sr(sHI)}, v{dst}')
    def swap_red(op, regs, kind, tmps):
        for r, t in zip(regs, tmps): a(f'v_mov_b32 v{t}, v{r}')
        for r, t in zip(regs, tmps): a(f'v_permlane{kind}_swap_b32 v{r}, v{t}')
        for r, t in zip(regs, tmps): a(f'{op} v{r}, v{r}, v{t}')
    def dpp_red(op, regs, ctl):
        for r in regs: a(f'{op}_dpp v{r}, v{r}, v{r} {ctl} {DPP}')
    def allred(op, regs, tmps):
        for ctl in ('quad_perm:[1,0,3,2]', 'quad_perm:[2,3,0,1]', 'row_half_mirror', 'row_mirror'):
            dpp_red(op, regs, ctl)
        swap_red(op, regs, 16, tmps); swap_red(op, regs, 32, tmps)
    def tred4(groups):
        for b in groups:
            a(f'v_permlane32_swap_b32 v{b}, v{b+1}'); a(f'v_permlane32_swap_b32 v{b+2}, v{b+3}')
        for b in groups:
            a(f'v_add_f32 v{b}, v{b}, v{b+1}'); a(f'v_add_f32 v{b+2}, v{b+2}, v{b+3}')
        for b in groups: a(f'v_permlane16_swap_b32 v{b}, v{b+2}')
        for b in groups: a(f'v_add_f32 v{b}, v{b}, v{b+2}')
    def check(regs):
        regs = list(regs)
        outs = []
        tm = [t0, t1, t2, t3, t4, t5, t6, t7]
        k = 0
        while regs:
            x = regs.pop(0); y = regs.pop(0) if regs else x
            a(f'v_bitop3_b32 v{tm[k]}, v{x}, v{y}, v{vT} bitop3:0x7e'); outs.append(tm[k]); k += 1
        while len(outs) > 1:
            if len(outs) >= 3:
                a(f'v_or3_b32 v{outs[0]}, v{outs[0]}, v{outs[1]}, v{outs[2]}'); outs = [outs[0]] + outs[3:]
            else:
                a(f'v_or_b32 v{outs[0]}, v{outs[0]}, v{outs[1]}'); outs = [outs[0]]
        a(f'v_and_b32 v{outs[0]}, 0xff, v{outs[0]}')
        a(f'v_cmp_ne_u32 vcc, 0, v{outs[0]}')
    pollid = [0]
    def poll(loads, regs):
        n = pollid[0]; pollid[0] += 1
        a(f's_mov_b32 {sr(sCNT)}, {SPIN}')
        a.settle()
        a.label(f'L_poll{n}')
        for l in loads: a(l)
        a('s_waitcnt vmcnt(0)')
        check(regs)
        a(f's_cbranch_vccz L_pdone{n}')
        a(f's_sub_u32 {sr(sCNT)}, {sr(sCNT)}, 1')
        a(f's_cbranch_scc0 L_poll{n}')
        a.label(f'L_pdone{n}')
    def tag(r):
        a(f'v_bfi_b32 v{r}, {sr(sFF)}, v{vT}, v{r}')
    def diag_gemv(frags, xreg4):
        for k, (f, x) in enumerate(zip(frags, xreg4)):
            ab = vA + 4 * (k % 4)
            for r in range(4): a(f'v_and_b32 v{ab+r}, v{x}, v{vM+r}')
            a(f'v_mfma_f32_16x16x32_bf16 {vr(vD,4)}, {vr(ab,4)}, {vr(f,4)}, ' + ('0' if k == 0 else vr(vD, 4)))
    trid = [0]
    def tile_reduce(trbase, vdst_off):
        n = trid[0]; trid[0] += 1
        a(f's_mov_b64 exec, {sr(sUSE,2)}')
        a(f'ds_write_b128 v{vTRW}, {vr(vD,4)} offset:{trbase}')
        a('s_mov_b64 exec, -1')
        a('s_waitcnt lgkmcnt(0)')
        a('s_barrier')
        a(f's_cmp_lg_u32 {sr(sW)}, 0')
        a(f's_cbranch_scc1 L_trskip{n}')
        for k in range(4): a(f'ds_read_b128 {vr(vG+4*k,4)}, v{vL16} offset:{trbase+1024*k}')
        a('s_waitcnt lgkmcnt(2)')
        a(f'v_pk_add_f32 {vr(vG,2)}, {vr(vG,2)}, {vr(vG+4,2)}')
        a(f'v_pk_add_f32 {vr(vG+2,2)}, {vr(vG+2,2)}, {vr(vG+6,2)}')
        a('s_waitcnt lgkmcnt(0)')
        a(f'v_pk_add_f32 {vr(vG+8,2)}, {vr(vG+8,2)}, {vr(vG+12,2)}')
        a(f'v_pk_add_f32 {vr(vG+10,2)}, {vr(vG+10,2)}, {vr(vG+14,2)}')
        a(f'v_pk_add_f32 {vr(vG,2)}, {vr(vG,2)}, {vr(vG+8,2)}')
        a(f'v_pk_add_f32 {vr(vG+2,2)}, {vr(vG+2,2)}, {vr(vG+10,2)}')
        tred4([vG])
        tag(vG)
        a(f'global_store_dword v{vdst_off}, v{vG}, {sr(pWS,2)} sc1')
        a.label(f'L_trskip{n}')
    def silu_dup(dst, src, tmp):
        a(f'v_mul_f32 v{tmp}, {sr(sLOG2E)}, v{src}')
        a(f'v_exp_f32 v{tmp}, -v{tmp}')
        a(f'v_add_f32 v{tmp}, 1.0, v{tmp}')
        a(f'v_rcp_f32 v{tmp}, v{tmp}')
        a(f'v_mul_f32 v{tmp}, v{src}, v{tmp}')
        a(f'v_cvt_pk_bf16_f32 v{dst}, v{tmp}, v{tmp}')
    def ln_finish(var, mean, x, n_out, ta, tb, tc):
        rb(var, var); rb(mean, mean)
        a(f'v_add_f32 v{var}, {EPS:#x}, v{var}')
        a(f'v_sub_f32 v{ta}, v{x}, v{mean}')
        rb(var, var); rb(ta, ta)
        a(f'v_sqrt_f32 v{var}, v{var}')
        rb(var, var)
        a(f'v_rcp_f32 v{tb}, v{var}')
        a(f'v_mul_f32 v{tc}, v{ta}, v{tb}')
        a(f'v_fma_f32 v{ta}, -v{tc}, v{var}, v{ta}')
        a(f'v_fma_f32 v{tc}, v{ta}, v{tb}, v{tc}')
        rb(n_out, tc)
    def finish(role):
        if diag:
            a('s_waitcnt lgkmcnt(0)')
            a(f's_cmp_lg_u32 {sr(sW)}, 0')
            a('s_cbranch_scc1 L_end')
            a(f's_lshl_b32 {sr(sT0)}, s2, 7')
            a(f's_add_u32 {sr(sT0)}, {sr(sT0)}, {STAMPS:#x}')
            a(f'v_mov_b32 v{t0}, {sr(sT0)}')
            a('s_mov_b64 exec, 1')
            for n in range(14):
                a(f'v_mov_b32 v{t1}, s{sSTAMP+2*n}')
                a(f'global_store_dword v{t0}, v{t1}, {sr(pWS,2)} offset:{4*n}')
        a('s_endpgm')

    a.raw(f'{KNAME}:')
    a('s_load_dwordx16 s[4:19], s[0:1], 0')
    a('s_load_dwordx8 s[20:27], s[0:1], 64')
    a('s_load_dwordx4 s[28:31], s[0:1], 96')
    if diag:
        for n in range(14): a(f's_mov_b64 s[{sSTAMP+2*n}:{sSTAMP+2*n+1}], 0')
    stamp()
    a('s_cmp_ge_u32 s2, 256')
    a('s_cbranch_scc1 L_end')
    a(f's_getpc_b64 {sr(sPC,2)}')
    a.label('L_pc')
    a(f'v_lshrrev_b32 v{t0}, 6, v0')
    a(f'v_and_b32 v{vL}, 63, v0')
    a(f'v_readfirstlane_b32 {sr(sW)}, v{t0}')
    a(f's_and_b32 {sr(sJ)}, s2, 7')
    a(f's_lshr_b32 {sr(sY)}, s2, 3')
    a(f'v_lshlrev_b32 v{vL16}, 4, v{vL}')
    a(f'v_lshrrev_b32 v{vRHO}, 3, v{vL}')
    a(f'v_and_b32 v{vC8}, 7, v{vL}')
    a(f's_min_u32 {sr(sT0)}, {sr(sY)}, {code_kb-1}')
    a(f's_lshl_b32 {sr(sT0)}, {sr(sT0)}, 10')
    a(f's_lshl_b32 {sr(sT1)}, {sr(sW)}, 7')
    a(f's_add_u32 {sr(sT0)}, {sr(sT0)}, {sr(sT1)}')
    a(f's_sub_u32 {sr(sPC)}, {sr(sPC)}, L_pc-{KNAME}')
    a(f's_subb_u32 {sr(sPC+1)}, {sr(sPC+1)}, 0')
    a(f'v_lshl_add_u32 v{t1}, v{vC8}, 4, {sr(sT0)}')
    a(f'global_load_dwordx4 {vr(vPF,4)}, v{t1}, {sr(sPC,2)}')
    a(f'v_mov_b32 v{t2}, 0')
    a(f's_cmp_ge_u32 {sr(sY)}, 16')
    a('s_cbranch_scc1 L_B')

    vK = V.get(32); vV = V.get(32); vWO = V.get(16); vS = V.get(32)
    vKo = V.get(); vN0 = V.get(); vN1 = V.get(); vQ = V.get(4); vO = V.get(8)
    vAd = V.get(6)
    zS0, zS1, zM, zL, zP0, zP1 = [V.get() for _ in range(6)]
    a_hi = V.mark()
    a(f'v_bfe_u32 v{t0}, v{vL}, 2, 2')
    a(f'v_lshrrev_b32 v{t1}, 4, v{vL}')
    a(f'v_and_b32 v{t3}, 3, v{vL}')
    a(f'v_lshlrev_b32 v{t0}, 8, v{t0}')
    a(f'v_lshl_add_u32 v{t0}, v{t1}, 6, v{t0}')
    a(f'v_lshl_add_u32 v{vKo}, v{t3}, 4, v{t0}')
    a(f's_lshl_b32 {sr(sT0)}, {sr(sJ)}, 24')
    a(f's_lshl_b32 {sr(sT1)}, {sr(sY)}, 16')
    a(f's_lshl_b32 {sr(sT2)}, {sr(sW)}, 13')
    a(f's_add_u32 {sr(sT0)}, {sr(sT0)}, {sr(sT1)}')
    a(f's_add_u32 {sr(sT0)}, {sr(sT0)}, {sr(sT2)}')
    a(f's_add_u32 {sr(sT0)}, {sr(sT0)}, {(65536-4096)*256+4096}')
    a('s_waitcnt lgkmcnt(0)')
    stamp()
    a(f's_add_u32 {sr(pK)}, {sr(pK)}, {sr(sT0)}')
    a(f's_addc_u32 {sr(pK+1)}, {sr(pK+1)}, 0')
    a(f'global_load_dword v{vE}, v{t2}, {sr(pWS,2)} sc1')
    for t in range(8):
        a(f'global_load_dwordx4 {vr(vK+4*t,4)}, v{vKo}, {sr(pK,2)} offset:{1024*t-4096} nt')
    a(f's_add_u32 {sr(pV)}, {sr(pV)}, {sr(sT0)}')
    a(f's_addc_u32 {sr(pV+1)}, {sr(pV+1)}, 0')
    for t in range(8):
        a(f'global_load_dwordx4 {vr(vV+4*t,4)}, v{vL16}, {sr(pV,2)} offset:{1024*t-4096} nt')
    a('s_branch L_A')

    V.reset(common_mark)
    vCs = V.get(); vMT = V.get(4); vX = V.get(4); vXd = V.get(); vWQ = V.get(16)
    vB0 = V.get(); vB1 = V.get(); vH = V.get(4)
    a.label('L_B')
    sI = sY
    a(f's_sub_u32 {sr(sI)}, {sr(sY)}, 16')
    a(f's_lshl_b32 {sr(sT0)}, {sr(sJ)}, 6')
    a(f's_lshl_b32 {sr(sT1)}, {sr(sW)}, 3')
    a(f's_add_u32 {sr(sT0)}, {sr(sT0)}, {sr(sT1)}')
    a(f'v_add_u32 v{t0}, {sr(sT0)}, v{vRHO}')
    a(f'v_lshlrev_b32 v{t1}, 1, v{t0}')
    a(f'v_mul_u32_u24 v{t0}, 6144, v{t0}')
    a(f's_lshl_b32 {sr(sT2)}, {sr(sI)}, 7')
    a(f'v_lshl_add_u32 v{t0}, v{vC8}, 4, v{t0}')
    a(f'v_add_u32 v{t0}, {sr(sT2)}, v{t0}')
    a(f'v_bfe_u32 v{t3}, v{vL}, 4, 1')
    a(f'v_lshrrev_b32 v{t4}, 5, v{vL}')
    a(f'v_lshl_add_u32 v{vR}, v{t3}, 1, v{t4}')
    a(f's_and_b32 {sr(sT0)}, {sr(sI)}, 1')
    a(f's_lshl_b32 {sr(sT0)}, {sr(sT0)}, 8')
    a(f's_lshl_b32 {sr(sT1)}, {sr(sW)}, 5')
    a(f's_add_u32 {sr(sT0)}, {sr(sT0)}, {sr(sT1)}')
    a(f'v_lshl_add_u32 v{t3}, v{vC8}, 2, v{vR}')
    a(f'v_add_lshl_u32 v{t3}, v{t3}, {sr(sT0)}, 1')
    a(f'v_lshl_add_u32 v{t4}, v{vRHO}, 2, {sr(sT0)}')
    a(f'v_lshlrev_b32 v{t4}, 13, v{t4}')
    a(f's_lshl_b32 {sr(sT1)}, {sr(sJ)}, 10')
    a(f's_lshr_b32 {sr(sT2)}, {sr(sI)}, 1')
    a(f's_lshl_b32 {sr(sT2)}, {sr(sT2)}, 7')
    a(f's_add_u32 {sr(sT1)}, {sr(sT1)}, {sr(sT2)}')
    a(f'v_lshl_add_u32 v{t4}, v{vC8}, 4, v{t4}')
    a(f'v_add_u32 v{t4}, {sr(sT1)}, v{t4}')
    a(f'v_mov_b32 v{vCs}, 0')
    a(f'v_mov_b32 v{vXd}, 0')
    a('s_waitcnt lgkmcnt(0)')
    stamp_at(1)
    a(f'global_load_short_d16_hi v{vCs}, v{t1}, {sr(pC,2)}')
    a(f'global_load_dwordx4 {vr(vMT,4)}, v{t0}, {sr(pWM,2)} nt')
    a(f'global_load_dword v{vE}, v{t2}, {sr(pWS,2)} sc1')
    a(f'global_load_dwordx4 {vr(vX,4)}, v{vL16}, {sr(pX,2)}')
    a(f'global_load_short_d16_hi v{vXd}, v{t3}, {sr(pX,2)}')
    for t in range(4):
        a(f'global_load_dwordx4 {vr(vWQ+4*t,4)}, v{t4}, {sr(pWQ,2)} nt')
        if t < 3: a(f'v_add_u32 v{t4}, 8192, v{t4}')

    def common_consts():
        a(f's_mov_b32 {sr(sLOG2E)}, {LOG2E:#x}')
        a(f's_mov_b32 {sr(sHI)}, 0xffff0000')
        a(f's_movk_i32 {sr(sFF)}, 0xff')
        a(f's_mov_b32 {sr(sUSE)}, 0x00ff00ff')
        a(f's_mov_b32 {sr(sUSE+1)}, 0xff00ff00')
        a(f'v_and_b32 v{t5}, 1, v{vL}')
        a(f'v_lshlrev_b32 v{t5}, 4, v{t5}')
        a(f'v_mov_b32 v{t6}, 0xffff')
        a(f'v_lshlrev_b32 v{t5}, v{t5}, v{t6}')
        a(f'v_lshrrev_b32 v{t6}, 1, v{vC8}')
        for r in range(4):
            a(f'v_cmp_eq_u32 vcc, {r}, v{t6}')
            a(f'v_cndmask_b32 v{vM+r}, 0, v{t5}, vcc')
        a(f'v_lshrrev_b32 v{t5}, 5, v{vL}')
        a(f'v_bfe_u32 v{t6}, v{vL}, 4, 1')
        a(f'v_lshlrev_b32 v{t5}, 8, v{t5}')
        a(f'v_lshl_add_u32 v{t5}, v{t6}, 4, v{t5}')
        a(f'v_lshl_add_u32 v{t5}, v{vC8}, 5, v{t5}')
        a(f's_lshl_b32 {sr(sT3)}, {sr(sW)}, 9')
        a(f'v_add_u32 v{vTRW}, {sr(sT3)}, v{t5}')
        a(f's_lshl_b32 {sr(sT3)}, {sr(sW)}, 7')
        a(f's_add_u32 {sr(sT3)}, {sr(sT3)}, {L_XD}')
        a(f'v_lshl_add_u32 v{t5}, v{vC8}, 2, v{vR}')
        a(f'v_lshl_add_u32 v{vXW}, v{t5}, 2, {sr(sT3)}')
        a(f'v_lshl_add_u32 v{vXR}, v{vRHO}, 4, {sr(sT3)}')
    common_consts()
    a(f'v_and_b32 v{t5}, 15, v{vL}')
    a(f'v_lshl_add_u32 v{t6}, v{t5}, 2, v{vR}')
    a(f's_lshl_b32 {sr(sT0)}, {sr(sI)}, 3')
    a(f's_add_u32 {sr(sT0)}, {sr(sT0)}, {sr(sJ)}')
    a(f's_lshl_b32 {sr(sT0)}, {sr(sT0)}, 8')
    a(f's_add_u32 {sr(sT0)}, {sr(sT0)}, {E1}')
    a(f'v_lshl_add_u32 v{vB0}, v{t6}, 2, {sr(sT0)}')
    a('s_waitcnt vmcnt(8)')
    silu_dup(t0, vCs, t1)
    a('s_waitcnt vmcnt(6)')
    stamp_at(2)
    diag_gemv([vMT], [t0])
    a(f'v_add_u32 v{vE}, 1, v{vE}')
    a(f'v_and_b32 v{vT}, 0xff, v{vE}')
    tile_reduce(L_TR1, vB0)
    stamp_at(3)
    a('s_waitcnt vmcnt(4)')
    xs = vG
    for k in range(4):
        a(f'v_lshlrev_b32 v{xs+2*k}, 16, v{vX+k}')
        a(f'v_and_b32 v{xs+2*k+1}, {sr(sHI)}, v{vX+k}')
    a(f'v_pk_add_f32 {vr(xs+8,2)}, {vr(xs,2)}, {vr(xs+2,2)}')
    a(f'v_pk_add_f32 {vr(xs+10,2)}, {vr(xs+4,2)}, {vr(xs+6,2)}')
    a(f'v_pk_add_f32 {vr(xs+8,2)}, {vr(xs+8,2)}, {vr(xs+10,2)}')
    a(f'v_add_f32 v{t0}, v{xs+8}, v{xs+9}')
    allred('v_add_f32', [t0], [t1])
    a(f'v_mul_f32 v{t0}, 0x3b000000, v{t0}')
    for k in range(8): a(f'v_sub_f32 v{xs+k}, v{xs+k}, v{t0}')
    a(f'v_mul_f32 v{t2}, v{xs}, v{xs}')
    for k in range(1, 8): a(f'v_fmac_f32 v{t2}, v{xs+k}, v{xs+k}')
    allred('v_add_f32', [t2], [t1])
    a(f'v_mul_f32 v{t2}, 0x3b000000, v{t2}')
    vN = vXd
    ln_finish(t2, t0, vXd, vN, t3, t4, t5)
    a(f's_and_b32 {sr(sT0)}, {sr(sI)}, 1')
    a(f's_lshl_b32 {sr(sT0)}, {sr(sT0)}, 2')
    a(f's_lshr_b32 {sr(sT1)}, {sr(sW)}, 1')
    a(f's_add_u32 {sr(sT0)}, {sr(sT0)}, {sr(sT1)}')
    a(f's_lshl_b32 {sr(sT0)}, {sr(sT0)}, 11')
    a(f's_and_b32 {sr(sT1)}, {sr(sW)}, 1')
    a(f's_lshl_b32 {sr(sT1)}, {sr(sT1)}, 7')
    a(f's_add_u32 {sr(sT0)}, {sr(sT0)}, {sr(sT1)}')
    a(f's_add_u32 {sr(sT0)}, {sr(sT0)}, {E1}')
    a(f'v_lshlrev_b32 v{t0}, 8, v{vRHO}')
    a(f'v_lshl_add_u32 v{t0}, v{vC8}, 4, v{t0}')
    a(f'v_add_u32 v{vH}, {sr(sT0)}, v{t0}')
    a(f'v_add_u32 v{vH+1}, {8*2048}, v{vH}')
    a(f'v_and_b32 v{t0}, 1, v{vL}')
    a(f'v_bfe_u32 v{t1}, v{vL}, 1, 3')
    a(f'v_lshlrev_b32 v{t0}, 5, v{t0}')
    a(f'v_lshl_add_u32 v{t0}, v{t1}, 2, v{t0}')
    a(f'v_add_u32 v{t0}, v{t0}, v{vR}')
    a(f's_lshl_b32 {sr(sT0)}, {sr(sJ)}, 4')
    a(f's_add_u32 {sr(sT0)}, {sr(sT0)}, {sr(sI)}')
    a(f's_lshl_b32 {sr(sT0)}, {sr(sT0)}, 8')
    a(f's_add_u32 {sr(sT0)}, {sr(sT0)}, {E2}')
    a(f'v_lshl_add_u32 v{vB1}, v{t0}, 2, {sr(sT0)}')
    stamp_at(4)
    poll([f'global_load_dwordx4 {vr(vG,4)}, v{vH}, {sr(pWS,2)} sc1',
          f'global_load_dwordx4 {vr(vG+4,4)}, v{vH+1}, {sr(pWS,2)} sc1'], range(vG, vG + 8))
    stamp_at(5)
    tred4([vG, vG + 4])
    dpp_red('v_add_f32', [vG, vG + 4], 'row_ror:8')
    rb(vG, vG); rb(vG + 4, vG + 4)
    a(f'v_add_f32 v{vG+4}, 1.0, v{vG+4}')
    rb(vG + 4, vG + 4)
    a(f'v_mul_f32 v{vG+4}, v{vN}, v{vG+4}')
    rb(vG + 4, vG + 4)
    a(f'v_add_f32 v{vG+4}, v{vG+4}, v{vG}')
    a(f'v_cvt_pk_bf16_f32 v{vG+4}, v{vG+4}, v{vG+4}')
    a(f'ds_write_b32 v{vXW}, v{vG+4}')
    a('s_waitcnt lgkmcnt(0)')
    a(f'ds_read_b128 {vr(vH,4)}, v{vXR}')
    a('s_waitcnt lgkmcnt(0)')
    diag_gemv([vWQ + 4 * t for t in range(4)], [vH + t for t in range(4)])
    tile_reduce(L_TR2, vB1)
    a('s_barrier')
    stamp_at(6)
    a(f's_cmp_ge_u32 {sr(sJ)}, 4')
    a(f's_cselect_b32 {sr(sT0)}, 12, 16')
    a(f's_cmp_ge_u32 {sr(sI)}, {sr(sT0)}')
    a('s_cbranch_scc1 L_MODB')

    V.reset(common_mark)
    vW = V.get(24)
    vFG = V.get(8); vFU = V.get(8); vFD = V.get(8)
    vDg = V.get(4); vDu = V.get(4); vDd = V.get(16)
    vE4 = V.get(4); vGA = V.get(); vSB = V.get(); vCB = V.get(); vX1 = V.get(); vE6 = V.get()
    vSt = V.get(); vH2W = V.get(); vH2R = V.get(); vGUW = V.get(); vGUR = V.get(); vE5 = V.get(); vSTR = V.get()
    a(f's_lshl_b32 {sr(sT0)}, {sr(sJ)}, 2')
    a(f's_mul_i32 {sr(sT1)}, {sr(sJ)}, 3')
    a(f's_add_u32 {sr(sT1)}, {sr(sT1)}, 4')
    a(f's_cmp_ge_u32 {sr(sJ)}, 4')
    a(f's_cselect_b32 {sr(sT0)}, {sr(sT1)}, {sr(sT0)}')
    a(f's_lshl_b32 {sr(sT0)}, {sr(sT0)}, 2')
    a(f's_add_u32 {sr(sFI)}, {sr(sT0)}, {sr(sI)}')
    a(f'v_lshrrev_b32 v{t0}, 1, v{vL}')
    a(f's_lshl_b32 {sr(sT0)}, {sr(sW)}, 6')
    a(f'v_add_u32 v{t0}, {sr(sT0)}, v{t0}')
    a(f'v_mul_u32_u24 v{t0}, 3584, v{t0}')
    a(f'v_and_b32 v{t1}, 1, v{vL}')
    a(f'v_lshl_add_u32 v{t0}, v{t1}, 4, v{t0}')
    a(f's_lshl_b32 {sr(sT1)}, {sr(sFI)}, 5')
    a(f'v_add_u32 v{t0}, {sr(sT1)}, v{t0}')
    a(f'v_add_u32 v{t1}, {32*3584}, v{t0}')
    a(f'global_load_dwordx4 {vr(vW,4)}, v{t0}, {sr(pWG,2)} nt')
    a(f'global_load_dwordx4 {vr(vW+4,4)}, v{t1}, {sr(pWG,2)} nt')
    a(f'global_load_dwordx4 {vr(vW+8,4)}, v{t0}, {sr(pWU,2)} nt')
    a(f'global_load_dwordx4 {vr(vW+12,4)}, v{t1}, {sr(pWU,2)} nt')
    a(f's_lshl_b32 {sr(sT1)}, {sr(sFI)}, 14')
    a(f's_lshl_b32 {sr(sT2)}, {sr(sW)}, 7')
    a(f's_add_u32 {sr(sT1)}, {sr(sT1)}, {sr(sT2)}')
    a(f'v_lshlrev_b32 v{t2}, 10, v{vRHO}')
    a(f'v_lshl_add_u32 v{t2}, v{vC8}, 4, v{t2}')
    a(f'v_add_u32 v{t2}, {sr(sT1)}, v{t2}')
    a(f'v_add_u32 v{t3}, 8192, v{t2}')
    a(f'global_load_dwordx4 {vr(vW+16,4)}, v{t2}, {sr(pWD,2)} nt')
    a(f'global_load_dwordx4 {vr(vW+20,4)}, v{t3}, {sr(pWD,2)} nt')
    a(f'v_and_b32 v{t4}, 15, v{vL}')
    a(f'v_lshl_add_u32 v{t5}, v{t4}, 2, v{vR}')
    a(f'v_add_lshl_u32 v{t6}, v{t5}, {sr(sT0)}, 1')
    a(f'v_mov_b32 v{vX1}, 0')
    a(f'global_load_short_d16_hi v{vX1}, v{t6}, {sr(pX,2)}')
    a(f'v_lshlrev_b32 v{t6}, 1, v{t6}')
    a(f'v_add_u32 v{vE6}, {E6+2048}, v{t6}')
    a(f's_lshl_b32 {sr(sT1)}, {sr(sW)}, 7')
    a(f's_add_u32 {sr(sT2)}, {sr(sT1)}, {L_H2}')
    a(f'v_lshl_add_u32 v{vH2W}, v{t5}, 1, {sr(sT2)}')
    a(f'v_lshrrev_b32 v{t7}, 4, v{vL}')
    a(f'v_lshl_add_u32 v{vH2R}, v{t7}, 4, {sr(sT2)}')
    a(f's_add_u32 {sr(sT2)}, {sr(sT1)}, {L_GU}')
    a(f'v_lshl_add_u32 v{vGUW}, v{vL}, 2, {sr(sT2)}')
    a(f'v_lshlrev_b32 v{t0}, 7, v{vC8}')
    a(f'v_bfe_u32 v{t1}, v{vL}, 3, 1')
    a(f'v_lshl_add_u32 v{t0}, v{t1}, 6, v{t0}')
    a(f'v_lshl_add_u32 v{t0}, v{t7}, 4, v{t0}')
    a(f'v_add_u32 v{vGUR}, {L_GU}, v{t0}')
    a(f'v_lshlrev_b32 v{vSTR}, 3, v{vC8}')
    a(f's_lshl_b32 {sr(sT2)}, {sr(sW)}, 8')
    a(f's_add_u32 {sr(sT3)}, {sr(sT2)}, {E4}')
    a(f'v_lshlrev_b32 v{t0}, 11, v{t7}')
    a(f'v_lshl_add_u32 v{t0}, v{t4}, 4, v{t0}')
    a(f'v_add_u32 v{vE4}, {sr(sT3)}, v{t0}')
    for k in range(1, 4): a(f'v_add_u32 v{vE4+k}, {8192*k}, v{vE4}')
    a(f's_lshl_b32 {sr(sT3)}, {sr(sFI)}, 11')
    a(f's_add_u32 {sr(sT3)}, {sr(sT3)}, {sr(sT2)}')
    a(f's_add_u32 {sr(sT3)}, {sr(sT3)}, {E5}')
    a(f'v_lshl_add_u32 v{vE5}, v{vL}, 2, {sr(sT3)}')
    a(f's_mul_i32 {sr(sT2)}, {sr(sW)}, 6144')
    a(f's_add_u32 {sr(sT2)}, {sr(sT2)}, {L_BIG}')
    a(f'v_add_u32 v{vSt}, {sr(sT2)}, v{vL16}')
    a(f'v_lshlrev_b32 v{t0}, 8, v{t7}')
    a(f'v_lshl_add_u32 v{t0}, v{t4}, 3, v{t0}')
    a(f'v_add_u32 v{t0}, {sr(sT2)}, v{t0}')
    a(f'v_lshrrev_b32 v{t1}, 2, v{vL}')
    a(f'v_and_b32 v{t2}, 3, v{vL}')
    a(f'v_lshlrev_b32 v{t1}, 7, v{t1}')
    a(f'v_lshl_add_u32 v{t1}, v{t2}, 3, v{t1}')
    a(f'v_add_u32 v{t1}, {sr(sT2)}, v{t1}')
    a(f's_mov_b32 {sr(sQ1)}, 0xffff0000')
    a(f's_mov_b32 {sr(sQ1+1)}, 0')
    a(f's_mov_b32 {sr(sQ2)}, 0')
    a(f's_mov_b32 {sr(sQ2+1)}, 0x0000ffff')
    a(f's_mov_b32 {sr(sQ3)}, 0')
    a(f's_mov_b32 {sr(sQ3+1)}, 0xffff0000')
    for k in range(6):
        a(f's_waitcnt vmcnt({6-k})')
        a(f'ds_write_b128 v{vSt}, {vr(vW+4*k,4)} offset:{1024*k}')
    a('s_waitcnt lgkmcnt(0)')
    for m, base in ((0, vFG), (1, vFU)):
        for sg in range(2):
            for aa in range(2):
                a(f'ds_read_b64_tr_b16 {vr(base+4*sg+2*aa,2)}, v{t0} offset:{2048*m+1024*sg+128*aa}')
    for tau in range(4):
        a(f'ds_read_b64_tr_b16 {vr(vFD+2*tau,2)}, v{t1} offset:{4096+32*tau}')
    stamp_at(7)
    poll([f'global_load_dword v{vGA}, v{vE6}, {sr(pWS,2)} offset:-2048 sc1',
          f'global_load_dword v{vSB}, v{vE6}, {sr(pWS,2)} sc1',
          f'global_load_dword v{vCB}, v{vE6}, {sr(pWS,2)} offset:2048 sc1'], [vGA, vSB, vCB])
    a(f'v_and_b32 v{vGA}, {sr(sHI)}, v{vGA}')
    a(f'v_and_b32 v{vSB}, {sr(sHI)}, v{vSB}')
    a(f'v_and_b32 v{vCB}, {sr(sHI)}, v{vCB}')
    a(f'v_add_f32 v{vCB}, 1.0, v{vCB}')
    rb(vCB, vCB)
    stamp_at(8)
    poll([f'global_load_dwordx4 {vr(vG+4*k,4)}, v{vE4+k}, {sr(pWS,2)} sc1' for k in range(4)], range(vG, vG + 16))
    stamp_at(9)
    a(f'v_pk_add_f32 {vr(vG,2)}, {vr(vG,2)}, {vr(vG+4,2)}')
    a(f'v_pk_add_f32 {vr(vG+2,2)}, {vr(vG+2,2)}, {vr(vG+6,2)}')
    a(f'v_pk_add_f32 {vr(vG+8,2)}, {vr(vG+8,2)}, {vr(vG+12,2)}')
    a(f'v_pk_add_f32 {vr(vG+10,2)}, {vr(vG+10,2)}, {vr(vG+14,2)}')
    a(f'v_pk_add_f32 {vr(vG,2)}, {vr(vG,2)}, {vr(vG+8,2)}')
    a(f'v_pk_add_f32 {vr(vG+2,2)}, {vr(vG+2,2)}, {vr(vG+10,2)}')
    tred4([vG])
    rb(vG, vG)
    a(f'v_mul_f32 v{vG}, v{vGA}, v{vG}')
    rb(vG, vG)
    a(f'v_add_f32 v{vG}, v{vX1}, v{vG}')
    rb(vX1, vG)
    a(f'v_readfirstlane_b32 {sr(sT0)}, v{vX1}')
    a(f'v_subrev_f32 v{t0}, {sr(sT0)}, v{vX1}')
    a(f'v_mul_f32 v{t1}, v{t0}, v{t0}')
    allred('v_add_f32', [t0, t1], [t2, t3])
    a(f'v_mul_f32 v{t2}, 0x3c800000, v{t0}')
    a(f'v_add_f32 v{vG}, {sr(sT0)}, v{t2}')
    a(f'v_fma_f32 v{vG+1}, -v{t2}, v{t0}, v{t1}')
    a(f's_lshl_b32 {sr(sT1)}, {sr(sW)}, 3')
    a(f'v_mov_b32 v{t4}, {sr(sT1)}')
    a('s_mov_b64 exec, 1')
    a(f'ds_write_b64 v{t4}, {vr(vG,2)} offset:{L_ST}')
    a('s_mov_b64 exec, -1')
    a('s_waitcnt lgkmcnt(0)')
    a('s_barrier')
    a(f'ds_read_b64 {vr(vG,2)}, v{vSTR} offset:{L_ST}')
    a('s_waitcnt lgkmcnt(0)')
    a(f'v_mov_b32 v{t0}, v{vG}')
    for ctl in ('quad_perm:[1,0,3,2]', 'quad_perm:[2,3,0,1]', 'row_half_mirror'): dpp_red('v_add_f32', [t0], ctl)
    a(f'v_mul_f32 v{t0}, 0x3e000000, v{t0}')
    a(f'v_sub_f32 v{t1}, v{vG}, v{t0}')
    a(f'v_mul_f32 v{t2}, 0x42800000, v{t1}')
    a(f'v_fmac_f32 v{vG+1}, v{t1}, v{t2}')
    for ctl in ('quad_perm:[1,0,3,2]', 'quad_perm:[2,3,0,1]', 'row_half_mirror'): dpp_red('v_add_f32', [vG + 1], ctl)
    a(f'v_mul_f32 v{t2}, 0x3b000000, v{vG+1}')
    ln_finish(t2, t0, vX1, t6, t3, t4, t5)
    a(f'v_mul_f32 v{t6}, v{t6}, v{vCB}')
    rb(t6, t6)
    a(f'v_add_f32 v{t6}, v{t6}, v{vSB}')
    a(f'v_cvt_pk_bf16_f32 v{t6}, v{t6}, v{t6}')
    a(f'ds_write_b16 v{vH2W}, v{t6}')
    a('s_waitcnt lgkmcnt(0)')
    a(f'ds_read_b128 {vr(vA,4)}, v{vH2R}')
    a(f'ds_read_b128 {vr(vA+4,4)}, v{vH2R} offset:64')
    a('s_waitcnt lgkmcnt(1)')
    a(f'v_mfma_f32_16x16x32_bf16 {vr(vDg,4)}, {vr(vA,4)}, {vr(vFG,4)}, 0')
    a(f'v_mfma_f32_16x16x32_bf16 {vr(vDu,4)}, {vr(vA,4)}, {vr(vFU,4)}, 0')
    a('s_waitcnt lgkmcnt(0)')
    a(f'v_mfma_f32_16x16x32_bf16 {vr(vDg,4)}, {vr(vA+4,4)}, {vr(vFG+4,4)}, {vr(vDg,4)}')
    a(f'v_mfma_f32_16x16x32_bf16 {vr(vDu,4)}, {vr(vA+4,4)}, {vr(vFU+4,4)}, {vr(vDu,4)}')
    a(f'v_cndmask_b32 v{t0}, v{vDg}, v{vDu}, {sr(sQ1,2)}')
    a('s_mov_b32 exec_hi, 0')
    a(f'ds_write_b32 v{vGUW}, v{t0}')
    a('s_mov_b64 exec, -1')
    a('s_waitcnt lgkmcnt(0)')
    a('s_barrier')
    stamp_at(10)
    a(f'ds_read_b128 {vr(vG,4)}, v{vGUR}')
    a('s_waitcnt lgkmcnt(0)')
    for ctl in ('quad_perm:[1,0,3,2]', 'quad_perm:[2,3,0,1]', 'row_half_mirror'):
        dpp_red('v_add_f32', [vG, vG + 1, vG + 2, vG + 3], ctl)
    a(f'v_cvt_pk_bf16_f32 v{t0}, v{vG}, v{vG+1}')
    a(f'v_cvt_pk_bf16_f32 v{t1}, v{vG+2}, v{vG+3}')
    a(f'v_lshlrev_b32 v{vG}, 16, v{t0}')
    a(f'v_and_b32 v{vG+1}, {sr(sHI)}, v{t0}')
    a(f'v_lshlrev_b32 v{vG+2}, 16, v{t1}')
    a(f'v_and_b32 v{vG+3}, {sr(sHI)}, v{t1}')
    for k in range(4): a(f'v_mul_f32_dpp v{vG+4+k}, v{vG+k}, v{vG+k} row_ror:8 {DPP}')
    a(f'v_cvt_pk_bf16_f32 v{vA}, v{vG+4}, v{vG+5}')
    a(f'v_cvt_pk_bf16_f32 v{vA+1}, v{vG+6}, v{vG+7}')
    for tau in range(4):
        a(f'v_mfma_f32_16x16x16_bf16 {vr(vDd+4*tau,4)}, {vr(vA,2)}, {vr(vFD+2*tau,2)}, 0')
    a(f'v_cndmask_b32 v{t0}, v{vDd}, v{vDd+4}, {sr(sQ1,2)}')
    a(f'v_cndmask_b32 v{t0}, v{t0}, v{vDd+8}, {sr(sQ2,2)}')
    a(f'v_cndmask_b32 v{t0}, v{t0}, v{vDd+12}, {sr(sQ3,2)}')
    tag(t0)
    a(f'global_store_dword v{vE5}, v{t0}, {sr(pWS,2)} sc1')
    stamp_at(11)
    finish('mlp')

    V.reset(common_mark)
    vWB = V.get(64); vCC = V.get(8); vM2 = V.get(4)
    a.label('L_MODB')
    a(f's_lshl_b32 {sr(sT0)}, {sr(sJ)}, 2')
    a(f's_add_u32 {sr(sFI)}, {sr(sT0)}, {sr(sI)}')
    a(f's_sub_u32 {sr(sFI)}, {sr(sFI)}, 28')
    a(f'v_lshrrev_b32 v{t7}, 4, v{vL}')
    a(f's_lshl_b32 {sr(sT0)}, {sr(sW)}, 6')
    a(f'v_lshl_add_u32 v{t0}, v{t7}, 4, {sr(sT0)}')
    a(f'v_lshlrev_b32 v{t1}, 1, v{t0}')
    a(f'global_load_dwordx4 {vr(vCC,4)}, v{t1}, {sr(pC,2)}')
    a(f'global_load_dwordx4 {vr(vCC+4,4)}, v{t1}, {sr(pC,2)} offset:16')
    a(f'v_mul_u32_u24 v{t0}, 6144, v{t0}')
    a(f'v_and_b32 v{t2}, 15, v{vL}')
    a(f'v_lshl_add_u32 v{t0}, v{t2}, 4, v{t0}')
    a(f's_lshl_b32 {sr(sT1)}, {sr(sFI)}, 8')
    a(f's_add_u32 {sr(sT1)}, {sr(sT1)}, 2048')
    a(f'v_add_u32 v{t0}, {sr(sT1)}, v{t0}')
    for t in range(16):
        a(f'global_load_dwordx4 {vr(vWB+4*t,4)}, v{t0}, {sr(pWM,2)} nt')
        if t < 15: a(f'v_add_u32 v{t0}, 6144, v{t0}')
    a(f'v_cmp_gt_u32 vcc, 8, v{t2}')
    for r in range(4): a(f'v_cndmask_b32 v{vM+r}, 0, v{vM+r}, vcc')
    a('s_waitcnt vmcnt(16)')
    for k in range(8):
        a(f'v_lshlrev_b32 v{t3}, 16, v{vCC+k}')
        a(f'v_and_b32 v{t4}, {sr(sHI)}, v{vCC+k}')
        silu_dup(vG + 2 * k, t3, t5)
        silu_dup(vG + 2 * k + 1, t4, t6)
    a(f's_lshl_b32 {sr(sT1)}, {sr(sW)}, 9')
    a(f's_add_u32 {sr(sT1)}, {sr(sT1)}, {L_BIG}')
    a(f'v_lshlrev_b32 v{t3}, 5, v{t2}')
    a(f'v_lshl_add_u32 v{t3}, v{t7}, 4, v{t3}')
    a(f'v_add_u32 v{t3}, {sr(sT1)}, v{t3}')
    a(f'v_lshlrev_b32 v{t4}, 2, v0')
    a(f's_lshl_b32 {sr(sT1)}, {sr(sFI)}, 9')
    a(f's_add_u32 {sr(sT1)}, {sr(sT1)}, {E6}')
    a(f'v_add_u32 v{t5}, {sr(sT1)}, v{t4}')
    for k in range(16):
        ab = vA + 4 * (k % 4)
        for r in range(4): a(f'v_and_b32 v{ab+r}, v{vG+k}, v{vM+r}')
        a(f's_waitcnt vmcnt({15-k})')
        a(f'v_mfma_f32_16x16x32_bf16 {vr(vD,4)}, {vr(ab,4)}, {vr(vWB+4*k,4)}, ' + ('0' if k == 0 else vr(vD, 4)))
    stamp_at(7)
    a('s_mov_b32 exec_hi, 0')
    a(f'ds_write_b128 v{t3}, {vr(vD,4)}')
    a('s_mov_b64 exec, -1')
    a('s_waitcnt lgkmcnt(0)')
    a('s_barrier')
    a(f's_cmp_ge_u32 {sr(sW)}, 2')
    a('s_cbranch_scc1 L_modb_done')
    for k in range(8): a(f'ds_read_b32 v{vG+k}, v{t4} offset:{L_BIG+512*k}')
    a('s_waitcnt lgkmcnt(0)')
    a(f'v_pk_add_f32 {vr(vG,2)}, {vr(vG,2)}, {vr(vG+2,2)}')
    a(f'v_pk_add_f32 {vr(vG+4,2)}, {vr(vG+4,2)}, {vr(vG+6,2)}')
    a(f'v_pk_add_f32 {vr(vG,2)}, {vr(vG,2)}, {vr(vG+4,2)}')
    a(f'v_add_f32 v{vG}, v{vG}, v{vG+1}')
    rb(vG, vG)
    a(f'v_or_b32 v{vG}, v{vG}, v{vT}')
    a(f'global_store_dword v{t5}, v{vG}, {sr(pWS,2)} sc1')
    a.label('L_modb_done')
    stamp_at(8)
    finish('modb')

    a.label('L_A')
    sS = sY
    a(f'v_bfe_u32 v{t3}, v{vL}, 4, 1')
    a(f'v_lshrrev_b32 v{t4}, 5, v{vL}')
    a(f'v_lshl_add_u32 v{vR}, v{t3}, 1, v{t4}')
    common_consts()
    a(f'v_and_b32 v{t0}, 1, v{vL}')
    a(f'v_lshlrev_b32 v{t0}, 4, v{t0}')
    a(f'v_mov_b32 v{t1}, 0xffff')
    a(f'v_lshlrev_b32 v{t0}, v{t0}, v{t1}')
    a(f'v_and_b32 v{t1}, 2, v{vL}')
    a(f'v_cmp_eq_u32 vcc, 0, v{t1}')
    a(f'v_cndmask_b32 v{vN0}, 0, v{t0}, vcc')
    a(f'v_cndmask_b32 v{vN1}, v{t0}, 0, vcc')
    for sq, val in ((sQ1, 0x22222222), (sQ2, 0x44444444), (sQ3, 0x88888888)):
        a(f's_mov_b32 {sr(sq)}, {val:#x}'); a(f's_mov_b32 {sr(sq+1)}, {val:#x}')
    a(f'v_bfe_u32 v{t0}, v{vL}, 2, 2')
    a(f'v_lshlrev_b32 v{t0}, 10, v{t0}')
    a(f'v_lshl_add_u32 v{t0}, v{t4}, 9, v{t0}')
    a(f'v_lshl_add_u32 v{t0}, v{t3}, 6, v{t0}')
    a(f'v_and_b32 v{t1}, 3, v{vL}')
    a(f'v_lshl_add_u32 v{t0}, v{t1}, 4, v{t0}')
    a(f's_lshl_b32 {sr(sT0)}, {sr(sJ)}, 12')
    a(f's_add_u32 {sr(sT0)}, {sr(sT0)}, {E2}')
    a(f'v_add_u32 v{vAd}, {sr(sT0)}, v{t0}')
    a(f's_and_b32 {sr(sT0)}, {sr(sS)}, 1')
    a(f's_lshl_b32 {sr(sT0)}, {sr(sT0)}, 1')
    a(f's_lshr_b32 {sr(sT1)}, {sr(sW)}, 2')
    a(f's_add_u32 {sr(sM)}, {sr(sT0)}, {sr(sT1)}')
    a(f's_bfe_u32 {sr(sM+1)}, {sr(sW)}, 0x10001')
    a(f's_and_b32 {sr(sT3)}, {sr(sW)}, 1')
    a(f's_lshl_b32 {sr(sT0)}, {sr(sJ)}, 9')
    a(f's_lshl_b32 {sr(sT1)}, {sr(sM)}, 7')
    a(f's_add_u32 {sr(sT0)}, {sr(sT0)}, {sr(sT1)}')
    a(f's_lshl_b32 {sr(sT1)}, {sr(sT3)}, 6')
    a(f's_add_u32 {sr(sT0)}, {sr(sT0)}, {sr(sT1)}')
    a(f's_lshl_b32 {sr(sT1)}, {sr(sM+1)}, 2')
    a(f's_add_u32 {sr(sT0)}, {sr(sT0)}, {sr(sT1)}')
    a(f's_lshl_b32 {sr(sT0)}, {sr(sT0)}, 10')
    a(f's_lshr_b32 {sr(sT1)}, {sr(sS)}, 1')
    a(f's_lshl_b32 {sr(sT1)}, {sr(sT1)}, 7')
    a(f's_add_u32 {sr(sT0)}, {sr(sT0)}, {sr(sT1)}')
    a(f'v_lshlrev_b32 v{t0}, 13, v{vRHO}')
    a(f'v_lshl_add_u32 v{t0}, v{vC8}, 4, v{t0}')
    a(f'v_add_u32 v{vAd+1}, {sr(sT0)}, v{t0}')
    a(f's_lshl_b32 {sr(sT0)}, {sr(sJ)}, 15')
    a(f's_lshl_b32 {sr(sT1)}, {sr(sM)}, 9')
    a(f's_add_u32 {sr(sT0)}, {sr(sT0)}, {sr(sT1)}')
    a(f's_lshl_b32 {sr(sT1)}, {sr(sM+1)}, 8')
    a(f's_add_u32 {sr(sT0)}, {sr(sT0)}, {sr(sT1)}')
    a(f's_lshl_b32 {sr(sT1)}, {sr(sT3)}, 7')
    a(f's_add_u32 {sr(sT0)}, {sr(sT0)}, {sr(sT1)}')
    a(f's_add_u32 {sr(sT0)}, {sr(sT0)}, {E3}')
    a(f'v_lshlrev_b32 v{t0}, 11, v{vRHO}')
    a(f'v_lshl_add_u32 v{t0}, v{vC8}, 4, v{t0}')
    a(f'v_add_u32 v{vAd+2}, {sr(sT0)}, v{t0}')
    a(f'v_add_u32 v{vAd+3}, 16384, v{vAd+2}')
    a(f's_lshl_b32 {sr(sT0)}, {sr(sJ)}, 14')
    a(f's_lshl_b32 {sr(sT1)}, {sr(sM+1)}, 9')
    a(f's_add_u32 {sr(sT0)}, {sr(sT0)}, {sr(sT1)}')
    a(f's_lshl_b32 {sr(sT1)}, {sr(sM)}, 7')
    a(f's_add_u32 {sr(sT0)}, {sr(sT0)}, {sr(sT1)}')
    a(f's_add_u32 {sr(sT0)}, {sr(sT0)}, {E3ML}')
    a(f'v_lshl_add_u32 v{vAd+4}, v{vRHO}, 10, {sr(sT0)}')
    a(f'v_add_u32 v{vAd+5}, 8192, v{vAd+4}')
    a('s_waitcnt vmcnt(16)')
    a(f'v_add_u32 v{vE}, 1, v{vE}')
    a(f'v_and_b32 v{vT}, 0xff, v{vE}')
    stamp_at(2)
    a(f's_cmp_lg_u32 {sr(sW)}, 0')
    a('s_cbranch_scc1 L_A_noq')
    poll([f'global_load_dwordx4 {vr(vG+8*u+4*i,4)}, v{vAd}, {sr(pWS,2)} offset:{256*u+128*i} sc1' for u in range(2) for i in range(2)],
         range(vG, vG + 16))
    for k in range(4): a(f'v_pk_add_f32 {vr(vG+2*k,2)}, {vr(vG+2*k,2)}, {vr(vG+8+2*k,2)}')
    for k in range(4): a(f'v_cvt_pk_bf16_f32 v{vQ+k}, v{vG+2*k}, v{vG+2*k+1}')
    a(f'ds_write_b128 v{vL16}, {vr(vQ,4)} offset:{L_Q}')
    a.label('L_A_noq')
    a('s_waitcnt vmcnt(0)')
    stamp_at(3)
    for p in range(4):
        a(f'v_swap_b32 v{vV+8*p+2}, v{vV+8*p+4}')
        a(f'v_swap_b32 v{vV+8*p+3}, v{vV+8*p+5}')
    a('s_waitcnt lgkmcnt(0)')
    a('s_barrier')
    stamp_at(4)
    a(f'ds_read_b128 {vr(vQ,4)}, v{vL16} offset:{L_Q}')
    for t in range(4):
        a(f'global_load_dwordx4 {vr(vWO+4*t,4)}, v{vAd+1}, {sr(pWO,2)} offset:{1024*t} nt')
    a('s_waitcnt lgkmcnt(0)')
    def smfma(t): a(f'v_mfma_f32_16x16x32_bf16 {vr(vS+4*t,4)}, {vr(vK+4*t,4)}, {vr(vQ,4)}, 0')
    def sdpp(t):
        d = vS + 4 * t; o = vK + 4 * (t % 4) + (t // 4)
        o = vG + t
        a(f'v_mov_b32_dpp v{o}, v{d} quad_perm:[0,0,0,0] {DPP}')
        for r in range(1, 4): a(f'v_add_f32_dpp v{o}, v{d+r}, v{o} quad_perm:[{r},{r},{r},{r}] {DPP}')
    for t in range(4): smfma(t)
    for t in range(8):
        sdpp(t)
        if t + 4 < 8: smfma(t + 4)
    for k, z in ((0, zS0), (1, zS1)):
        a(f'v_cndmask_b32 v{z}, v{vG+4*k}, v{vG+4*k+1}, {sr(sQ1,2)}')
        a(f'v_cndmask_b32 v{z}, v{z}, v{vG+4*k+2}, {sr(sQ2,2)}')
        a(f'v_cndmask_b32 v{z}, v{z}, v{vG+4*k+3}, {sr(sQ3,2)}')
    a(f'v_cvt_pk_bf16_f32 v{t0}, v{zS0}, v{zS1}')
    a(f'v_lshlrev_b32 v{zS0}, 16, v{t0}')
    a(f'v_and_b32 v{zS1}, {sr(sHI)}, v{t0}')
    a(f'v_mul_f32 v{zS0}, {SCALE:#x}, v{zS0}')
    a(f'v_mul_f32 v{zS1}, {SCALE:#x}, v{zS1}')
    a(f'v_cvt_pk_bf16_f32 v{t0}, v{zS0}, v{zS1}')
    a(f'v_lshlrev_b32 v{zS0}, 16, v{t0}')
    a(f'v_and_b32 v{zS1}, {sr(sHI)}, v{t0}')
    a(f'v_max_f32 v{zM}, v{zS0}, v{zS1}')
    dpp_red('v_max_f32', [zM], 'quad_perm:[1,0,3,2]'); dpp_red('v_max_f32', [zM], 'quad_perm:[2,3,0,1]')
    swap_red('v_max_f32', [zM], 16, [t1]); swap_red('v_max_f32', [zM], 32, [t1])
    a(f'v_sub_f32 v{zS0}, v{zS0}, v{zM}')
    a(f'v_sub_f32 v{zS1}, v{zS1}, v{zM}')
    a(f'v_mul_f32 v{zS0}, {sr(sLOG2E)}, v{zS0}')
    a(f'v_mul_f32 v{zS1}, {sr(sLOG2E)}, v{zS1}')
    a(f'v_exp_f32 v{zS0}, v{zS0}')
    a(f'v_exp_f32 v{zS1}, v{zS1}')
    a(f'v_cvt_pk_bf16_f32 v{zP0}, v{zS0}, v{zS0}')
    a(f'v_cvt_pk_bf16_f32 v{zP1}, v{zS1}, v{zS1}')
    a(f'v_add_f32 v{zL}, v{zS0}, v{zS1}')
    for p in range(4):
        ab = vA + 4 * p
        for k in range(2):
            t = 2 * p + k; src = zP0 if t < 4 else zP1; q = t & 3
            a(f'v_and_b32_dpp v{ab+2*k}, v{src}, v{vN0} quad_perm:[{q},{q},{q},{q}] {DPP}')
            a(f'v_and_b32_dpp v{ab+2*k+1}, v{src}, v{vN1} quad_perm:[{q},{q},{q},{q}] {DPP}')
        a(f'v_mfma_f32_16x16x32_bf16 {vr(vO,4)}, {vr(ab,4)}, {vr(vV+8*p,4)}, ' + ('0' if p == 0 else vr(vO, 4)))
        a(f'v_mfma_f32_16x16x32_bf16 {vr(vO+4,4)}, {vr(ab,4)}, {vr(vV+8*p+4,4)}, ' + ('0' if p == 0 else vr(vO + 4, 4)))
    dpp_red('v_add_f32', [zL], 'quad_perm:[1,0,3,2]'); dpp_red('v_add_f32', [zL], 'quad_perm:[2,3,0,1]')
    swap_red('v_add_f32', [zL], 16, [t1]); swap_red('v_add_f32', [zL], 32, [t1])
    assert zL == zM + 1 and zM % 2 == 0
    a(f's_lshl_b32 {sr(sT0)}, {sr(sW)}, 3')
    a(f'v_lshl_add_u32 v{t0}, v{vL}, 4, {sr(sT0)}')
    a(f's_lshl_b32 {sr(sT1)}, {sr(sW)}, 11')
    a(f'v_add_u32 v{t1}, {sr(sT1)}, v{vL16}')
    a('s_mov_b64 exec, 0x1111')
    a(f'ds_write_b64 v{t0}, {vr(zM,2)} offset:{L_ML}')
    a('s_mov_b64 exec, -1')
    a(f'ds_write_b128 v{t1}, {vr(vO,4)} offset:{L_BIG}')
    a(f'ds_write_b128 v{t1}, {vr(vO+4,4)} offset:{L_BIG+1024}')
    a(f's_and_b32 {sr(sT0)}, {sr(sW)}, 3')
    a(f's_lshl_b32 {sr(sT1)}, {sr(sT0)}, 6')
    a(f'v_lshl_add_u32 v{t2}, v{vC8}, 3, {sr(sT1)}')
    a(f'v_lshlrev_b32 v{t3}, 2, v0')
    a(f's_lshl_b32 {sr(sT1)}, {sr(sJ)}, 4')
    a(f's_add_u32 {sr(sT1)}, {sr(sT1)}, {sr(sS)}')
    a(f's_lshl_b32 {sr(sT2)}, {sr(sT1)}, 3')
    a(f's_add_u32 {sr(sT2)}, {sr(sT2)}, {sr(sW)}')
    a(f's_lshl_b32 {sr(sT2)}, {sr(sT2)}, 7')
    a(f's_add_u32 {sr(sT2)}, {sr(sT2)}, {E3ML}')
    a(f'v_mov_b32 v{t5}, {sr(sT2)}')
    a(f's_lshl_b32 {sr(sT1)}, {sr(sT1)}, 11')
    a(f's_lshl_b32 {sr(sT0)}, {sr(sT0)}, 9')
    a(f's_add_u32 {sr(sT1)}, {sr(sT1)}, {sr(sT0)}')
    a(f's_lshr_b32 {sr(sT0)}, {sr(sW)}, 2')
    a(f's_lshl_b32 {sr(sT0)}, {sr(sT0)}, 8')
    a(f's_add_u32 {sr(sT1)}, {sr(sT1)}, {sr(sT0)}')
    a(f's_add_u32 {sr(sT1)}, {sr(sT1)}, {E3}')
    a(f'v_lshl_add_u32 v{t4}, v{vL}, 2, {sr(sT1)}')
    a('s_waitcnt lgkmcnt(0)')
    a('s_barrier')
    stamp_at(5)
    a(f'ds_read_b64 {vr(zM,2)}, v{t2} offset:{L_ML}')
    for k in range(8): a(f'ds_read_b32 v{vG+k}, v{t3} offset:{L_BIG+2048*k}')
    a('s_waitcnt lgkmcnt(8)')
    a(f'v_mov_b32 v{zS0}, v{zM}')
    for ctl in ('quad_perm:[1,0,3,2]', 'quad_perm:[2,3,0,1]', 'row_half_mirror'): dpp_red('v_max_f32', [zS0], ctl)
    a(f'v_sub_f32 v{zM}, v{zM}, v{zS0}')
    a(f'v_mul_f32 v{zM}, {sr(sLOG2E)}, v{zM}')
    a(f'v_exp_f32 v{zM}, v{zM}')
    a(f'v_mul_f32 v{zS1}, v{zM}, v{zL}')
    a('s_waitcnt lgkmcnt(0)')
    a(f'v_mul_f32_dpp v{t0}, v{zM}, v{vG} row_newbcast:0 {DPP}')
    a(f'v_mul_f32_dpp v{t1}, v{zM}, v{vG+1} row_newbcast:1 {DPP}')
    for k in range(2, 8): a(f'v_fmac_f32_dpp v{t0 if k%2==0 else t1}, v{zM}, v{vG+k} row_newbcast:{k} {DPP}')
    a(f'v_add_f32 v{t0}, v{t0}, v{t1}')
    tag(t0)
    a(f'global_store_dword v{t4}, v{t0}, {sr(pWS,2)} sc1')
    for ctl in ('quad_perm:[1,0,3,2]', 'quad_perm:[2,3,0,1]', 'row_half_mirror'): dpp_red('v_add_f32', [zS1], ctl)
    assert zS1 == zS0 + 1 and zS0 % 2 == 0
    tag(zS0); tag(zS1)
    a('s_mov_b64 exec, 1')
    a(f'global_store_dwordx2 v{t5}, {vr(zS0,2)}, {sr(pWS,2)} sc1')
    a('s_mov_b64 exec, -1')
    stamp_at(6)
    a(f's_lshl_b32 {sr(sT0)}, {sr(sJ)}, 1')
    a(f's_and_b32 {sr(sT1)}, {sr(sS)}, 1')
    a(f's_add_u32 {sr(sT0)}, {sr(sT0)}, {sr(sT1)}')
    a(f's_lshl_b32 {sr(sT0)}, {sr(sT0)}, 11')
    a(f's_lshr_b32 {sr(sT1)}, {sr(sS)}, 1')
    a(f's_lshl_b32 {sr(sT1)}, {sr(sT1)}, 8')
    a(f's_add_u32 {sr(sT0)}, {sr(sT0)}, {sr(sT1)}')
    a(f's_add_u32 {sr(sT0)}, {sr(sT0)}, {E4}')
    a(f'v_and_b32 v{t5}, 15, v{vL}')
    a(f'v_lshl_add_u32 v{t6}, v{t5}, 2, v{vR}')
    a(f'v_lshl_add_u32 v{vKo}, v{t6}, 2, {sr(sT0)}')
    poll([f'global_load_dwordx2 {vr(vG+8,2)}, v{vAd+4}, {sr(pWS,2)} sc1',
          f'global_load_dwordx2 {vr(vG+10,2)}, v{vAd+5}, {sr(pWS,2)} sc1',
          f'global_load_dwordx4 {vr(vG,4)}, v{vAd+2}, {sr(pWS,2)} sc1',
          f'global_load_dwordx4 {vr(vG+4,4)}, v{vAd+3}, {sr(pWS,2)} sc1'], range(vG, vG + 12))
    stamp_at(7)
    m0, l0, m1, l1 = vG + 8, vG + 9, vG + 10, vG + 11
    a(f'v_max_f32 v{zM}, v{m0}, v{m1}')
    dpp_red('v_max_f32', [zM], 'row_ror:8')
    swap_red('v_max_f32', [zM], 16, [t1]); swap_red('v_max_f32', [zM], 32, [t1])
    a(f'v_sub_f32 v{m0}, v{m0}, v{zM}')
    a(f'v_sub_f32 v{m1}, v{m1}, v{zM}')
    a(f'v_mul_f32 v{m0}, {sr(sLOG2E)}, v{m0}')
    a(f'v_mul_f32 v{m1}, {sr(sLOG2E)}, v{m1}')
    a(f'v_exp_f32 v{m0}, v{m0}')
    a(f'v_exp_f32 v{m1}, v{m1}')
    a(f'v_mul_f32 v{zL}, v{m0}, v{l0}')
    for r in range(4): a(f'v_mul_f32 v{vG+r}, v{m0}, v{vG+r}')
    a(f'v_fmac_f32 v{zL}, v{m1}, v{l1}')
    for r in range(4): a(f'v_fmac_f32 v{vG+r}, v{m1}, v{vG+4+r}')
    dpp_red('v_add_f32', [zL], 'row_ror:8')
    a(f'v_mov_b32 v{t1}, v{zL}')
    a(f'v_permlane32_swap_b32 v{vG}, v{vG+1}'); a(f'v_permlane32_swap_b32 v{vG+2}, v{vG+3}')
    a(f'v_permlane16_swap_b32 v{zL}, v{t1}')
    a(f'v_add_f32 v{vG}, v{vG}, v{vG+1}'); a(f'v_add_f32 v{vG+2}, v{vG+2}, v{vG+3}')
    a(f'v_add_f32 v{zL}, v{zL}, v{t1}')
    a(f'v_mov_b32 v{t1}, v{zL}')
    a(f'v_permlane16_swap_b32 v{vG}, v{vG+2}')
    a(f'v_permlane32_swap_b32 v{zL}, v{t1}')
    a(f'v_add_f32 v{vG}, v{vG}, v{vG+2}')
    a(f'v_add_f32 v{zL}, v{zL}, v{t1}')
    a(f'v_rcp_f32 v{zL}, v{zL}')
    dpp_red('v_add_f32', [vG], 'row_ror:8')
    a(f'v_mul_f32 v{vG}, v{vG}, v{zL}')
    a(f'v_cvt_pk_bf16_f32 v{vG}, v{vG}, v{vG}')
    a(f'ds_write_b32 v{vXW}, v{vG}')
    a('s_waitcnt lgkmcnt(0)')
    a(f'ds_read_b128 {vr(vQ,4)}, v{vXR}')
    a('s_waitcnt lgkmcnt(0)')
    diag_gemv([vWO + 4 * t for t in range(4)], [vQ + t for t in range(4)])
    tile_reduce(L_TR1, vKo)
    stamp_at(8)
    a(f's_cmp_ge_u32 {sr(sS)}, 2')
    a('s_cbranch_scc1 L_A_done')
    a(f's_lshl_b32 {sr(sFI)}, {sr(sJ)}, 1')
    a(f's_add_u32 {sr(sFI)}, {sr(sFI)}, {sr(sS)}')
    a(f's_lshl_b32 {sr(sT0)}, {sr(sFI)}, 7')
    a(f'v_lshlrev_b32 v{t0}, 11, v{vRHO}')
    a(f'v_lshl_add_u32 v{t0}, v{vC8}, 4, v{t0}')
    a(f'v_add_u32 v{t0}, {sr(sT0)}, v{t0}')
    a(f'v_lshl_add_u32 v{t1}, v{vC8}, 2, v{vR}')
    a(f's_cmp_eq_u32 {sr(sW)}, 7')
    a('s_cbranch_scc1 L_fin_x2')
    a(f's_lshl_b32 {sr(sT1)}, {sr(sW)}, 15')
    a(f's_add_u32 {sr(sT1)}, {sr(sT1)}, {E5}')
    a(f'v_add_u32 v{vAd}, {sr(sT1)}, v{t0}')
    a(f'v_add_u32 v{vAd+1}, 16384, v{vAd}')
    a(f's_lshl_b32 {sr(sT1)}, {sr(sW)}, 7')
    a(f'v_lshl_add_u32 v{vAd+2}, v{t1}, 2, {sr(sT1)}')
    poll([f'global_load_dwordx4 {vr(vG,4)}, v{vAd}, {sr(pWS,2)} sc1',
          f'global_load_dwordx4 {vr(vG+4,4)}, v{vAd+1}, {sr(pWS,2)} sc1'], range(vG, vG + 8))
    stamp_at(9)
    a(f'v_pk_add_f32 {vr(vG,2)}, {vr(vG,2)}, {vr(vG+4,2)}')
    a(f'v_pk_add_f32 {vr(vG+2,2)}, {vr(vG+2,2)}, {vr(vG+6,2)}')
    tred4([vG])
    dpp_red('v_add_f32', [vG], 'row_ror:8')
    a(f'ds_write_b32 v{vAd+2}, v{vG} offset:{L_FIN}')
    a('s_waitcnt lgkmcnt(0)')
    a('s_barrier')
    stamp_at(10)
    a('s_branch L_A_done')
    a.label('L_fin_x2')
    a(f'v_add_u32 v{vAd}, {E4}, v{t0}')
    a(f'v_add_u32 v{vAd+1}, 16384, v{vAd}')
    a(f'v_lshl_add_u32 v{t2}, v{t1}, 2, {sr(sT0)}')
    a(f'v_add_u32 v{vAd+2}, {E6+3072}, v{t2}')
    a(f'v_lshrrev_b32 v{vAd+3}, 1, v{t2}')
    a(f'v_lshlrev_b32 v{vAd+4}, 2, v{t1}')
    a(f'v_mov_b32 v{zP0}, 0')
    a(f'global_load_short_d16_hi v{zP0}, v{vAd+3}, {sr(pX,2)}')
    poll([f'global_load_dword v{vG+8}, v{vAd+2}, {sr(pWS,2)} offset:-3072 sc1',
          f'global_load_dword v{vG+9}, v{vAd+2}, {sr(pWS,2)} offset:3072 sc1',
          f'global_load_dwordx4 {vr(vG,4)}, v{vAd}, {sr(pWS,2)} sc1',
          f'global_load_dwordx4 {vr(vG+4,4)}, v{vAd+1}, {sr(pWS,2)} sc1'], range(vG, vG + 10))
    a(f'v_pk_add_f32 {vr(vG,2)}, {vr(vG,2)}, {vr(vG+4,2)}')
    a(f'v_pk_add_f32 {vr(vG+2,2)}, {vr(vG+2,2)}, {vr(vG+6,2)}')
    tred4([vG])
    dpp_red('v_add_f32', [vG], 'row_ror:8')
    a(f'v_and_b32 v{vG+8}, {sr(sHI)}, v{vG+8}')
    a(f'v_and_b32 v{vG+9}, {sr(sHI)}, v{vG+9}')
    rb(vG, vG)
    a(f'v_mul_f32 v{vG}, v{vG+8}, v{vG}')
    rb(vG, vG)
    a(f'v_add_f32 v{vG}, v{zP0}, v{vG}')
    rb(zP0, vG)
    a('s_barrier')
    for k in range(7): a(f'ds_read_b32 v{vG+k}, v{vAd+4} offset:{L_FIN+128*k}')
    a('s_waitcnt lgkmcnt(0)')
    a(f'v_pk_add_f32 {vr(vG,2)}, {vr(vG,2)}, {vr(vG+2,2)}')
    a(f'v_add_f32 v{vG+4}, v{vG+4}, v{vG+5}')
    a(f'v_add_f32 v{vG}, v{vG}, v{vG+1}')
    a(f'v_add_f32 v{vG+4}, v{vG+4}, v{vG+6}')
    a(f'v_add_f32 v{vG}, v{vG}, v{vG+4}')
    rb(vG, vG)
    a(f'v_mul_f32 v{vG}, v{vG+9}, v{vG}')
    rb(vG, vG)
    a(f'v_add_f32 v{vG}, v{zP0}, v{vG}')
    a(f'v_cvt_pk_bf16_f32 v{vG}, v{vG}, v{vG}')
    a(f's_mov_b32 {sr(sM)}, 0x00ff00ff')
    a(f's_mov_b32 {sr(sM+1)}, 0x00ff00ff')
    a(f's_mov_b64 exec, {sr(sM,2)}')
    a(f'global_store_short v{vAd+3}, v{vG}, {sr(pOUT,2)}')
    if diag:
        a(f's_memrealtime s[{sSTAMP}:{sSTAMP+1}]')
        a(f's_lshl_b32 {sr(sT0)}, s2, 7')
        a(f's_add_u32 {sr(sT0)}, {sr(sT0)}, {STAMPS+56:#x}')
        a(f'v_mov_b32 v{t0}, {sr(sT0)}')
        a('s_waitcnt lgkmcnt(0)')
        a(f'v_mov_b32 v{t1}, s{sSTAMP}')
        a(f'global_store_dword v{t0}, v{t1}, {sr(pWS,2)}')
    a(f's_cmp_lg_u32 {sr(sFI)}, 0')
    a('s_cbranch_scc1 L_end')
    a('s_mov_b64 exec, 1')
    a(f'v_mov_b32 v{t0}, 0')
    a(f'global_store_dword v{t0}, v{vE}, {sr(pWS,2)} sc1')
    a('s_endpgm')
    a.label('L_A_done')
    finish('A')
    a.label('L_end')
    a('s_endpgm')

    nv = (V.hi + 7) // 8 * 8
    head = [f'; @launch grid=(256,1,1) block=(512,1,1) lds={LDS_BYTES}',
            '.amdgcn_target "amdgcn-amd-amdhsa--gfx950"', '.text', f'.globl {KNAME}', '.p2align 8', f'.type {KNAME},@function']
    tail = [f'.fill ({code_kb}*1024 - (. - {KNAME}))/4, 4, 0xbf810000',
            '.section .rodata,"a"', '.p2align 6', f'.amdhsa_kernel {KNAME}',
            f'  .amdhsa_next_free_vgpr {nv}', '  .amdhsa_next_free_sgpr 100', f'  .amdhsa_accum_offset {nv}',
            '  .amdhsa_group_segment_fixed_size 0', '  .amdhsa_kernarg_size 112', '  .amdhsa_user_sgpr_count 2',
            '  .amdhsa_user_sgpr_kernarg_segment_ptr 1', '  .amdhsa_system_sgpr_workgroup_id_x 1',
            '  .amdhsa_float_denorm_mode_32 3', '.end_amdhsa_kernel']
    return '\n'.join(head) + '\n' + a.text() + '\n'.join(tail) + '\n', nv, a.nnop

if __name__ == '__main__':
    out = sys.argv[1]
    diag = len(sys.argv) > 2 and sys.argv[2] == 'diag'
    s, nv, nn = gen(diag, code_kb=10 if not diag else 12)
    open(out, 'w').write(s)
    print('vgprs', nv, 'nops', nn)
```

```python
import sys
sys.path.insert(0, 'gen')
from asmlib import Asm, RegAlloc, vr, sr

KNAME = 'adaLN_cond__sliding_block_cached__glu_gated_bilinear__decode_kernel'
LOG2E = 0x3fb8aa3b
SCALE = 0x3db504f3
EPS = 0x3727c5ac
DPP = 'row_mask:0xf bank_mask:0xf'
Q1, Q2, HM, RM = 'quad_perm:[1,0,3,2]', 'quad_perm:[2,3,0,1]', 'row_half_mirror', 'row_mirror'

E1, E2, E3, E3ML, E4, E6, E5, E7 = 0x1000, 0x10000, 0x20000, 0x60000, 0x80000, 0x90000, 0xA0000, 0x70000
STAMPS = 0x10000000
SPIN = 200000

L_TR1, L_TR2 = 0, 2048
L_XD = 4096
L_Q = 5120
L_ML = 6144
L_FIN = 6272
L_ST = 6784
L_GU = 6912
L_H2 = 7424
L_BIG = 8448
LDS_BYTES = L_BIG + 49152

def gen(diag=False, code_kb=12, adelay=0, h1wait=4, pfpol=1, pf=1, exp=0, vsplit=16, local3=0):
    a = Asm()
    S = RegAlloc('s', 32, 68)
    V = RegAlloc('v', 1, 256)
    pX, pK, pV, pWQ, pWO, pWG, pWU = 4, 6, 8, 10, 12, 16, 18
    pWD, pC, pWM, pOUT, pWS = 20, 22, 24, 26, 30
    WS = sr(pWS, 2)
    sJ, sY, sW, sT0, sT1, sT2, sT3, sCNT = [S.get() for _ in range(8)]
    sLOG2E, sHI, sFF, sFI = [S.get() for _ in range(4)]
    sUSE = S.get(2); sQ1 = S.get(2); sQ2 = S.get(2); sQ3 = S.get(2); sPC = S.get(2); sM = S.get(2)
    sSC = S.get(2)
    T0, T1, T2, T3 = sr(sT0), sr(sT1), sr(sT2), sr(sT3)
    J, Y, W, HI = sr(sJ), sr(sY), sr(sW), sr(sHI)
    sSTAMP = 68
    NST = 15
    def stamp(n):
        if diag: a(f's_memrealtime s[{sSTAMP+2*n}:{sSTAMP+2*n+1}]')
    vL = V.get(); vRHO = V.get(); vC8 = V.get(); vL16 = V.get(); vT = V.get(); vE = V.get()
    vR = V.get(); vG4 = V.get(); vC16 = V.get(); vZ = V.get()
    vM = V.get(4)
    vTRW = V.get(); vXW = V.get(); vXR = V.get()
    vPF = V.get(4); vDUM = V.get()
    t = [V.get() for _ in range(10)]
    t0, t1, t2, t3, t4, t5, t6, t7, t8, t9 = t
    vG = V.get(32)
    vA = V.get(16)
    vD = V.get(4)
    common_mark = V.mark()

    def rb(dst, src):
        a(f'v_cvt_pk_bf16_f32 v{dst}, v{src}, v{src}')
        a(f'v_and_b32 v{dst}, {HI}, v{dst}')
    def rb2(d0, s0, s1, tmp):
        a(f'v_cvt_pk_bf16_f32 v{tmp}, v{s0}, v{s1}')
        a(f'v_lshlrev_b32 v{d0}, 16, v{tmp}')
        a(f'v_and_b32 v{d0+1}, {HI}, v{tmp}')
    def swap_red(op, regs, kind, tmps):
        for r, x in zip(regs, tmps): a(f'v_mov_b32 v{x}, v{r}')
        for r, x in zip(regs, tmps): a(f'v_permlane{kind}_swap_b32 v{r}, v{x}')
        for r, x in zip(regs, tmps): a(f'{op} v{r}, v{r}, v{x}')
    def dpp_red(op, regs, ctl):
        for r in regs: a(f'{op}_dpp v{r}, v{r}, v{r} {ctl} {DPP}')
    def allred(op, regs, tmps):
        for ctl in (Q1, Q2, HM, RM): dpp_red(op, regs, ctl)
        swap_red(op, regs, 16, tmps); swap_red(op, regs, 32, tmps)
    def red63(regs):
        for ctl in (Q1, Q2, HM, RM): dpp_red('v_add_f32', regs, ctl)
        for r in regs: a(f'v_add_f32_dpp v{r}, v{r}, v{r} row_bcast:15 row_mask:0xa bank_mask:0xf')
        for r in regs: a(f'v_add_f32_dpp v{r}, v{r}, v{r} row_bcast:31 row_mask:0xc bank_mask:0xf')
    def tred4(groups):
        for b in groups:
            a(f'v_permlane32_swap_b32 v{b}, v{b+1}'); a(f'v_permlane32_swap_b32 v{b+2}, v{b+3}')
        for b in groups:
            a(f'v_add_f32 v{b}, v{b}, v{b+1}'); a(f'v_add_f32 v{b+2}, v{b+2}, v{b+3}')
        for b in groups: a(f'v_permlane16_swap_b32 v{b}, v{b+2}')
        for b in groups: a(f'v_add_f32 v{b}, v{b}, v{b+2}')
    def pkadd(d, x, y): a(f'v_pk_add_f32 {vr(d,2)}, {vr(x,2)}, {vr(y,2)}')
    pollid = [0]
    deferred = []
    def poll(loads, post=None):
        n = pollid[0]; pollid[0] += 1
        N = len(loads)
        a(f's_mov_b32 {sr(sCNT)}, {SPIN}')
        for txt, regs in loads: a(txt)
        for k, (txt, regs) in enumerate(loads):
            a.label(f'L_chk{n}_{k}')
            a(f's_waitcnt vmcnt({N-1-k})')
            for r in regs: a(f'v_xor_b32 v{r}, v{vT}, v{r}')
            rs = list(regs)
            if len(rs) == 4:
                a(f'v_or3_b32 v{t8}, v{rs[0]}, v{rs[1]}, v{rs[2]}')
                a(f'v_and_or_b32 v{t8}, v{t8}, {sr(sFF)}, 0' if False else f'v_or_b32 v{t8}, v{t8}, v{rs[3]}')
            elif len(rs) == 2:
                a(f'v_or_b32 v{t8}, v{rs[0]}, v{rs[1]}')
            src = t8 if len(rs) > 1 else rs[0]
            a(f'v_cmp_ne_u32_sdwa vcc, v{src}, v{vZ} src0_sel:BYTE_0 src1_sel:DWORD')
            a(f's_cbranch_vccnz L_rty{n}_{k}')
            a.label(f'L_ok{n}_{k}')
            if post: post(k)
        def handlers():
            for k in range(N):
                a.label(f'L_rty{n}_{k}')
                a(f's_sub_u32 {sr(sCNT)}, {sr(sCNT)}, 1')
                a(f's_cbranch_scc1 L_ok{n}_{k}')
                for txt, regs in loads[k:]: a(txt)
                a(f's_branch L_chk{n}_{k}')
        deferred.append(handlers)
    def flush_handlers():
        while deferred: deferred.pop(0)()
    def ld4(r, addr, off=0): return (f'global_load_dwordx4 {vr(r,4)}, v{addr}, {WS} offset:{off} sc1', list(range(r, r + 4)))
    def ld2(r, addr, off=0): return (f'global_load_dwordx2 {vr(r,2)}, v{addr}, {WS} offset:{off} sc1', [r, r + 1])
    def ld1(r, addr, off=0): return (f'global_load_dword v{r}, v{addr}, {WS} offset:{off} sc1', [r])
    def tag(r): a(f'v_bfi_b32 v{r}, {sr(sFF)}, v{vT}, v{r}')
    def diag_gemv(frags, xregs, waits=None):
        n = len(frags)
        def build(k):
            ab = vA + 4 * (k % 4)
            for r in range(4): a(f'v_and_b32 v{ab+r}, v{xregs[k]}, v{vM+r}')
        build(0)
        for k in range(n):
            if k + 1 < n: build(k + 1)
            if waits: a(waits[k])
            a(f'v_mfma_f32_16x16x32_bf16 {vr(vD,4)}, {vr(vA+4*(k%4),4)}, {vr(frags[k],4)}, ' + ('0' if k == 0 else vr(vD, 4)))
    trid = [0]
    def tile_reduce(trbase, vdst_off):
        n = trid[0]; trid[0] += 1
        a(f's_mov_b64 exec, {sr(sUSE,2)}')
        a(f'ds_write_b128 v{vTRW}, {vr(vD,4)} offset:{trbase}')
        a('s_mov_b64 exec, -1')
        a(f's_cmp_lg_u32 {W}, 0')
        a('s_waitcnt lgkmcnt(0)')
        a('s_barrier')
        a(f's_cbranch_scc1 L_trskip{n}')
        for k in range(2): a(f'ds_read_b128 {vr(vG+4*k,4)}, v{vL16} offset:{trbase+1024*k}')
        a('s_waitcnt lgkmcnt(0)')
        pkadd(vG, vG, vG + 4); pkadd(vG + 2, vG + 2, vG + 6)
        tred4([vG])
        tag(vG)
        a(f'global_store_dword v{vdst_off}, v{vG}, {WS} sc1')
        a.label(f'L_trskip{n}')
    def silu_dup(dst, src, tmp):
        a(f'v_mul_f32 v{tmp}, {sr(sLOG2E)}, v{src}')
        a(f'v_exp_f32 v{tmp}, -v{tmp}')
        a(f'v_add_f32 v{tmp}, 1.0, v{tmp}')
        a(f'v_rcp_f32 v{tmp}, v{tmp}')
        a(f'v_mul_f32 v{tmp}, v{src}, v{tmp}')
        a(f'v_cvt_pk_bf16_f32 v{dst}, v{tmp}, v{tmp}')
    def finish():
        if diag:
            a('s_waitcnt lgkmcnt(0)')
            a(f's_lshl_b32 {T0}, s2, 3')
            a(f's_add_u32 {T0}, {T0}, {W}')
            a(f's_lshl_b32 {T0}, {T0}, 7')
            a(f's_add_u32 {T0}, {T0}, {STAMPS:#x}')
            a(f'v_mov_b32 v{t0}, {T0}')
            a('s_mov_b64 exec, 1')
            for n in range(NST):
                a(f'v_mov_b32 v{t1}, s{sSTAMP+2*n}')
                a(f'global_store_dword v{t0}, v{t1}, {WS} offset:{4*n}')
        a('s_endpgm')
        flush_handlers()
    def helper_stamp(slot):
        if diag:
            a(f's_memrealtime s[{sSTAMP}:{sSTAMP+1}]')
            a(f's_lshl_b32 {T0}, s2, 7')
            a(f's_add_u32 {T0}, {T0}, {STAMPS+4*slot:#x}')
            a(f'v_mov_b32 v{t0}, {T0}')
            a('s_waitcnt lgkmcnt(0)')
            a(f'v_mov_b32 v{t1}, s{sSTAMP}')
            a(f'global_store_dword v{t0}, v{t1}, {WS}')
    def common_consts():
        a(f's_mov_b32 {sr(sLOG2E)}, {LOG2E:#x}')
        a(f's_mov_b32 {HI}, 0xffff0000')
        a(f's_movk_i32 {sr(sFF)}, 0xff')
        a(f's_mov_b32 {sr(sUSE)}, 0x00ff00ff')
        a(f's_mov_b32 {sr(sUSE+1)}, 0xff00ff00')
        a(f'v_and_b32 v{t5}, 1, v{vL}')
        a(f'v_lshlrev_b32 v{t5}, 4, v{t5}')
        a(f'v_mov_b32 v{t6}, 0xffff')
        a(f'v_lshlrev_b32 v{t5}, v{t5}, v{t6}')
        a(f'v_lshrrev_b32 v{t6}, 1, v{vC8}')
        for r in range(4):
            a(f'v_cmp_eq_u32 vcc, {r}, v{t6}')
            a(f'v_cndmask_b32 v{vM+r}, 0, v{t5}, vcc')
        a(f'v_lshrrev_b32 v{t5}, 5, v{vL}')
        a(f'v_bfe_u32 v{t6}, v{vL}, 4, 1')
        a(f'v_lshlrev_b32 v{t5}, 8, v{t5}')
        a(f'v_lshl_add_u32 v{t5}, v{t6}, 4, v{t5}')
        a(f'v_lshl_add_u32 v{t5}, v{vC8}, 5, v{t5}')
        a(f's_lshl_b32 {T3}, {W}, 9')
        a(f'v_add_u32 v{vTRW}, {T3}, v{t5}')
        a(f's_lshl_b32 {T3}, {W}, 8')
        a(f's_add_u32 {T3}, {T3}, {L_XD}')
        a(f'v_lshl_add_u32 v{t5}, v{vC16}, 2, v{vR}')
        a(f'v_lshl_add_u32 v{vXW}, v{t5}, 2, {T3}')
        a(f'v_lshl_add_u32 v{vXR}, v{vRHO}, 5, {T3}')

    a.raw(f'{KNAME}:')
    a('s_load_dwordx16 s[4:19], s[0:1], 0')
    a('s_load_dwordx8 s[20:27], s[0:1], 64')
    a('s_load_dwordx4 s[28:31], s[0:1], 96')
    a(f's_getpc_b64 {sr(sPC,2)}')
    a.label('L_pc')
    a('s_cmp_ge_u32 s2, 256')
    a('s_cbranch_scc1 L_end')
    a(f's_lshr_b32 {Y}, s2, 3')
    a(f'v_lshrrev_b32 v{t0}, 6, v0')
    a(f's_mul_i32 {T0}, {Y}, 5')
    a(f'v_add_u32 v{t1}, {T0}, v{t0}')
    a(f'v_min_u32 v{t1}, {code_kb*8-2}, v{t1}')
    a(f'v_lshlrev_b32 v{t1}, 7, v{t1}')
    a(f'global_load_dword v{vDUM}, v{t1}, {sr(sPC,2)}')
    if diag:
        for n in range(NST): a(f's_mov_b64 s[{sSTAMP+2*n}:{sSTAMP+2*n+1}], 0')
    stamp(0)
    a(f'v_and_b32 v{vL}, 63, v0')
    a(f'v_readfirstlane_b32 {W}, v{t0}')
    a(f's_and_b32 {J}, s2, 7')
    a(f'v_lshlrev_b32 v{vL16}, 4, v{vL}')
    a(f'v_lshrrev_b32 v{vRHO}, 3, v{vL}')
    a(f'v_and_b32 v{vC8}, 7, v{vL}')
    a(f'v_lshrrev_b32 v{vG4}, 4, v{vL}')
    a(f'v_and_b32 v{vC16}, 15, v{vL}')
    a(f'v_mov_b32 v{vZ}, 0')
    a(f's_cmp_lt_u32 {Y}, 16')
    a('s_cbranch_scc1 L_A0')
    a(f's_cmp_eq_u32 {W}, 4')
    a('s_cbranch_scc1 L_end')

    vK = V.get(64); vV = V.get(64); vS = vA
    vWO = V.get(32)
    a_regs = dict(vKo=V.get(2), vN0=V.get(), vN1=V.get())
    vKo, vN0, vN1 = a_regs['vKo'], a_regs['vN0'], a_regs['vN1']
    aV2 = V.get()
    a_mark = V.mark()
    vQ = vG + 24; vO = vG + 16
    V.reset(common_mark)
    vSd = V.get(4); vB2 = V.get(); vMB = V.get(); vPFA = V.get()
    vE4 = V.get(4); vX1 = V.get(2); vE6 = V.get(); aNR = V.get(); aDN = V.get(); aTG = V.get(); aTD = V.get()
    vSt = V.get(); vH2W = V.get(); vH2R = V.get(); vGUW = V.get(); vGUR = V.get(); vE5 = V.get(); vSTR = V.get(); vSTW = V.get()
    keep_mark = V.mark()
    vCs = V.get(); vMT = V.get(8); vX = V.get(4); vXd = V.get(); vWQ = V.get(32)
    vB0 = V.get(); vB1 = V.get(); vH = V.get(8)
    I = Y
    a(f's_sub_u32 {I}, {Y}, 16')
    a(f's_lshl_b32 {T0}, {J}, 6')
    a(f's_lshl_b32 {T1}, {W}, 4')
    a(f's_add_u32 {T0}, {T0}, {T1}')
    a(f'v_lshl_add_u32 v{t0}, v{vRHO}, 1, {T0}')
    a(f'v_lshlrev_b32 v{t1}, 1, v{t0}')
    a(f'v_mul_u32_u24 v{t0}, 6144, v{t0}')
    a(f's_lshl_b32 {T2}, {I}, 7')
    a(f'v_lshl_add_u32 v{t0}, v{vC8}, 4, v{t0}')
    a(f'v_add_u32 v{t0}, {T2}, v{t0}')
    a(f'v_add_u32 v{t5}, 6144, v{t0}')
    a('s_waitcnt lgkmcnt(0)')
    stamp(1)
    a(f'global_load_dword v{vCs}, v{t1}, {sr(pC,2)}')
    a(f'global_load_dwordx4 {vr(vMT,4)}, v{t0}, {sr(pWM,2)} nt')
    a(f'global_load_dwordx4 {vr(vMT+4,4)}, v{t5}, {sr(pWM,2)} nt')
    a(f'global_load_dword v{vE}, v{vZ}, {WS} sc1')
    a(f'v_bfe_u32 v{t3}, v{vL}, 4, 1')
    a(f'v_lshrrev_b32 v{t4}, 5, v{vL}')
    a(f'v_lshl_add_u32 v{vR}, v{t3}, 1, v{t4}')
    a(f's_and_b32 {T0}, {I}, 1')
    a(f's_lshl_b32 {T0}, {T0}, 8')
    a(f's_lshl_b32 {T1}, {W}, 6')
    a(f's_add_u32 {T0}, {T0}, {T1}')
    a(f'v_lshl_add_u32 v{t3}, v{vC16}, 2, v{vR}')
    a(f'v_add_lshl_u32 v{t3}, v{t3}, {T0}, 1')
    a(f'v_lshl_add_u32 v{t4}, v{vRHO}, 3, {T0}')
    a(f'v_lshlrev_b32 v{t4}, 13, v{t4}')
    a(f's_lshl_b32 {T1}, {J}, 10')
    a(f's_lshr_b32 {T2}, {I}, 1')
    a(f's_lshl_b32 {T2}, {T2}, 7')
    a(f's_add_u32 {T1}, {T1}, {T2}')
    a(f'v_lshl_add_u32 v{t4}, v{vC8}, 4, v{t4}')
    a(f'v_add_u32 v{t4}, {T1}, v{t4}')
    a(f'v_mov_b32 v{vXd}, 0')
    a(f's_and_b32 {T0}, {I}, 3')
    a(f's_lshl_b32 {T0}, {T0}, 7')
    a(f's_lshl_b32 {T1}, {W}, 5')
    a(f's_add_u32 {T0}, {T0}, {T1}')
    a(f'v_lshl_add_u32 v{vMB}, v{vRHO}, 2, {T0}')
    a(f'v_lshlrev_b32 v{t6}, 1, v{vMB}')
    a(f'v_and_b32 v{t7}, 31, v{vL}')
    a(f'v_lshrrev_b32 v{t5}, 5, v{vL}')
    a(f'v_lshlrev_b32 v{t7}, 3, v{t7}')
    a(f'v_lshl_add_u32 v{t7}, v{t5}, 2, v{t7}')
    a(f's_lshl_b32 {T1}, {W}, 8')
    a(f'v_add_u32 v{t7}, {T1}, v{t7}')
    a('s_barrier')
    a(f'global_load_dwordx4 {vr(vX,4)}, v{vL16}, {sr(pX,2)}')
    a(f'global_load_short_d16_hi v{vXd}, v{t3}, {sr(pX,2)}')
    a(f'global_load_dwordx2 {vr(vSd+2,2)}, v{t6}, {sr(pC,2)}')
    a(f'global_load_dword v{vX1}, v{t7}, {sr(pX,2)}')
    for k in range(8):
        a(f'global_load_dwordx4 {vr(vWQ+4*k,4)}, v{t4}, {sr(pWQ,2)} nt')
        if k < 7: a(f'v_add_u32 v{t4}, 8192, v{t4}')
    common_consts()
    a(f'v_lshl_add_u32 v{t6}, v{vC16}, 2, v{vR}')
    a(f's_lshl_b32 {T0}, {I}, 3')
    a(f's_add_u32 {T0}, {T0}, {J}')
    a(f's_lshl_b32 {T0}, {T0}, 8')
    a(f's_add_u32 {T0}, {T0}, {E1}')
    a(f'v_lshl_add_u32 v{vB0}, v{t6}, 2, {T0}')
    a('s_waitcnt vmcnt(15)')
    a(f'v_lshlrev_b32 v{t3}, 16, v{vCs}')
    a(f'v_and_b32 v{t4}, {HI}, v{vCs}')
    silu_dup(t0, t3, t5); silu_dup(t1, t4, t6)
    diag_gemv([vMT, vMT + 4], [t0, t1], ['s_waitcnt vmcnt(14)', 's_waitcnt vmcnt(12)'])
    stamp(2)
    a(f'v_add_u32 v{vE}, 1, v{vE}')
    a(f'v_and_b32 v{vT}, 0xff, v{vE}')
    tile_reduce(L_TR1, vB0)
    stamp(3)
    a('s_waitcnt vmcnt(8)')
    xs = vG
    for k in range(4):
        a(f'v_lshlrev_b32 v{xs+2*k}, 16, v{vX+k}')
        a(f'v_and_b32 v{xs+2*k+1}, {HI}, v{vX+k}')
    pkadd(xs + 8, xs, xs + 2); pkadd(xs + 10, xs + 4, xs + 6); pkadd(xs + 8, xs + 8, xs + 10)
    a(f'v_add_f32 v{t0}, v{xs+8}, v{xs+9}')
    allred('v_add_f32', [t0], [t1])
    a(f'v_mul_f32 v{t0}, 0x3b000000, v{t0}')
    for k in range(8): a(f'v_sub_f32 v{xs+k}, v{xs+k}, v{t0}')
    a(f'v_mul_f32 v{t2}, v{xs}, v{xs}')
    for k in range(1, 8): a(f'v_fmac_f32 v{t2}, v{xs+k}, v{xs+k}')
    allred('v_add_f32', [t2], [t1])
    a(f'v_mul_f32 v{t2}, 0x3b000000, v{t2}')
    vN = vXd
    rb(t2, t2); rb(t0, t0)
    a(f'v_add_f32 v{t2}, {EPS:#x}, v{t2}')
    a(f'v_sub_f32 v{t3}, v{vXd}, v{t0}')
    rb(t2, t2); rb(t3, t3)
    a(f'v_sqrt_f32 v{t2}, v{t2}')
    rb(t2, t2)
    a(f'v_rcp_f32 v{t4}, v{t2}')
    a(f'v_mul_f32 v{t5}, v{t3}, v{t4}')
    a(f'v_fma_f32 v{t3}, -v{t5}, v{t2}, v{t3}')
    a(f'v_fma_f32 v{t5}, v{t3}, v{t4}, v{t5}')
    rb(vN, t5)
    a(f'v_lshlrev_b32 v{t0}, 16, v{vSd+2}')
    a(f'v_and_b32 v{t1}, {HI}, v{vSd+2}')
    a(f'v_lshlrev_b32 v{t2}, 16, v{vSd+3}')
    a(f'v_and_b32 v{t3}, {HI}, v{vSd+3}')
    for k in range(4): silu_dup(vSd + k, t[k], t5)
    a(f's_lshl_b32 {T0}, {J}, 4')
    a(f's_add_u32 {T0}, {T0}, {I}')
    a(f's_lshr_b32 {T1}, {T0}, 2')
    a(f's_lshl_b32 {T1}, {T1}, 7')
    a(f's_add_u32 {T1}, {T1}, 2048')
    a(f'v_mul_u32_u24 v{vMB}, 6144, v{vMB}')
    a(f'v_lshl_add_u32 v{vMB}, v{vC8}, 4, v{vMB}')
    a(f'v_add_u32 v{vMB}, {T1}, v{vMB}')
    a(f's_lshl_b32 {T0}, {T0}, 8')
    a(f's_add_u32 {T0}, {T0}, {E7}')
    a(f'v_lshl_add_u32 v{t6}, v{vC16}, 2, v{vR}')
    a(f'v_lshl_add_u32 v{vB2}, v{t6}, 2, {T0}')
    a(f's_and_b32 {T0}, {I}, 1')
    a(f's_lshl_b32 {T0}, {T0}, 2')
    a(f's_add_u32 {T0}, {T0}, {W}')
    a(f's_lshl_b32 {T0}, {T0}, 11')
    a(f's_add_u32 {T0}, {T0}, {E1}')
    a(f'v_add_u32 v{vH}, {T0}, v{vL16}')
    a(f'v_add_u32 v{vH+1}, {8*2048}, v{vH}')
    a(f'v_and_b32 v{t0}, 1, v{vL}')
    a(f'v_bfe_u32 v{t1}, v{vL}, 1, 3')
    a(f'v_lshlrev_b32 v{t0}, 5, v{t0}')
    a(f'v_lshl_add_u32 v{t0}, v{t1}, 2, v{t0}')
    a(f'v_add_u32 v{t0}, v{t0}, v{vR}')
    a(f's_lshl_b32 {T0}, {J}, 4')
    a(f's_add_u32 {T0}, {T0}, {I}')
    a(f's_lshl_b32 {T0}, {T0}, 8')
    a(f's_add_u32 {T0}, {T0}, {E2}')
    a(f'v_lshl_add_u32 v{vB1}, v{t0}, 2, {T0}')
    FI = sr(sFI)
    a(f's_lshl_b32 {T0}, {J}, 2')
    a(f's_mul_i32 {T1}, {J}, 3')
    a(f's_add_u32 {T1}, {T1}, 4')
    a(f's_cmp_ge_u32 {J}, 4')
    a(f's_cselect_b32 {T0}, {T1}, {T0}')
    a(f's_cselect_b32 {T2}, 12, 16')
    a(f's_lshl_b32 {T0}, {T0}, 2')
    a(f's_add_u32 {FI}, {T0}, {I}')
    a(f's_cmp_ge_u32 {I}, {T2}')
    a(f's_cselect_b32 {sr(sM)}, 1, 0')
    a(f's_and_b32 {T0}, {FI}, 3')
    a(f's_lshl_b32 {T0}, {T0}, 7')
    a(f's_lshl_b32 {T1}, {W}, 5')
    a(f's_add_u32 {T0}, {T0}, {T1}')
    a(f'v_add_u32 v{vPFA}, {T0}, v{vRHO}')
    a(f'v_mul_u32_u24 v{vPFA}, 3584, v{vPFA}')
    a(f's_lshr_b32 {T1}, {FI}, 2')
    a(f's_lshl_b32 {T1}, {T1}, 7')
    a(f'v_lshl_add_u32 v{vPFA}, v{vC8}, 4, v{vPFA}')
    a(f'v_add_u32 v{vPFA}, {T1}, v{vPFA}')
    a(f'v_lshrrev_b32 v{t0}, 1, v{vL}')
    a(f's_lshl_b32 {T0}, {W}, 7')
    a(f'v_add_u32 v{t0}, {T0}, v{t0}')
    a(f'v_mul_u32_u24 v{t0}, 3584, v{t0}')
    a(f'v_and_b32 v{t1}, 1, v{vL}')
    a(f'v_lshl_add_u32 v{t0}, v{t1}, 4, v{t0}')
    a(f's_lshl_b32 {T1}, {FI}, 5')
    a(f'v_add_u32 v{aNR}, {T1}, v{t0}')
    a(f's_lshl_b32 {T1}, {FI}, 14')
    a(f's_lshl_b32 {T2}, {W}, 8')
    a(f's_add_u32 {T1}, {T1}, {T2}')
    a(f'v_lshlrev_b32 v{t2}, 10, v{vG4}')
    a(f'v_lshl_add_u32 v{t2}, v{vC16}, 4, v{t2}')
    a(f'v_add_u32 v{aDN}, {T1}, v{t2}')
    a(f'v_and_b32 v{t4}, 31, v{vL}')
    a(f'v_lshrrev_b32 v{t5}, 5, v{vL}')
    a(f'v_lshlrev_b32 v{t5}, 1, v{t5}')
    a(f'v_lshl_add_u32 v{t5}, v{t4}, 2, v{t5}')
    a(f'v_add_lshl_u32 v{t6}, v{t5}, {T0}, 2')
    a(f'v_add_u32 v{vE6}, {E6+2048}, v{t6}')
    a(f's_add_u32 {T3}, {T2}, {L_H2}')
    a(f'v_lshl_add_u32 v{vH2W}, v{t5}, 1, {T3}')
    a(f'v_lshl_add_u32 v{vH2R}, v{vG4}, 4, {T3}')
    a(f's_add_u32 {T3}, {T0}, {L_GU}')
    a(f'v_lshl_add_u32 v{vGUW}, v{vL}, 2, {T3}')
    a(f'v_and_b32 v{t0}, 3, v{vL}')
    a(f'v_lshlrev_b32 v{vSTR}, 3, v{t0}')
    a(f'v_lshlrev_b32 v{t0}, 7, v{t0}')
    a(f'v_bfe_u32 v{t1}, v{vL}, 3, 1')
    a(f'v_lshl_add_u32 v{t0}, v{t1}, 6, v{t0}')
    a(f'v_lshl_add_u32 v{t0}, v{vG4}, 4, v{t0}')
    a(f'v_add_u32 v{vGUR}, {L_GU}, v{t0}')
    a(f's_lshl_b32 {T3}, {W}, 3')
    a(f'v_mov_b32 v{vSTW}, {T3}')
    a(f's_lshl_b32 {T2}, {W}, 9')
    a(f's_add_u32 {T3}, {T2}, {E4+4096-2048}')
    a(f'v_lshrrev_b32 v{t0}, 5, v{vL}')
    a(f'v_lshlrev_b32 v{t0}, 11, v{t0}')
    a(f'v_lshl_add_u32 v{t0}, v{t4}, 4, v{t0}')
    a(f'v_add_u32 v{vE4}, {T3}, v{t0}')
    for k in range(1, 4): a(f'v_add_u32 v{vE4+k}, {8192*k}, v{vE4}')
    a(f's_lshl_b32 {T3}, {FI}, 11')
    a(f's_add_u32 {T3}, {T3}, {T2}')
    a(f's_add_u32 {T3}, {T3}, {E5}')
    a(f'v_lshl_add_u32 v{vE5}, v{vL}, 2, {T3}')
    a(f's_mul_i32 {T2}, {W}, 12288')
    a(f's_add_u32 {T2}, {T2}, {L_BIG}')
    a(f'v_add_u32 v{vSt}, {T2}, v{vL16}')
    a(f'v_lshlrev_b32 v{t0}, 8, v{vG4}')
    a(f'v_lshl_add_u32 v{t0}, v{vC16}, 3, v{t0}')
    a(f'v_add_u32 v{aTG}, {T2}, v{t0}')
    a(f'v_lshrrev_b32 v{t1}, 2, v{vL}')
    a(f'v_and_b32 v{t2}, 3, v{vL}')
    a(f'v_lshlrev_b32 v{t1}, 8, v{t1}')
    a(f'v_lshl_add_u32 v{t1}, v{t2}, 3, v{t1}')
    a(f'v_add_u32 v{aTD}, {T2}, v{t1}')
    a(f's_mov_b32 {sr(sQ1)}, 0xffff0000')
    a(f's_mov_b32 {sr(sQ1+1)}, 0')
    a(f's_mov_b32 {sr(sQ2)}, 0')
    a(f's_mov_b32 {sr(sQ2+1)}, 0x0000ffff')
    a(f's_mov_b32 {sr(sQ3)}, 0')
    a(f's_mov_b32 {sr(sQ3+1)}, 0xffff0000')
    stamp(4)
    a(f's_waitcnt vmcnt({h1wait})')
    stamp(12)
    def post1(k):
        if k == 1: pkadd(vG, vG, vG + 4); pkadd(vG + 2, vG + 2, vG + 6)
        if k == 3: pkadd(vG + 8, vG + 8, vG + 12); pkadd(vG + 10, vG + 10, vG + 14)
    poll([ld4(vG, vH), ld4(vG + 4, vH, 1024), ld4(vG + 8, vH + 1), ld4(vG + 12, vH + 1, 1024)], post1)
    stamp(5)
    tred4([vG, vG + 8])
    rb2(t0, vG, vG + 8, t2)
    a(f'v_add_f32 v{t1}, 1.0, v{t1}')
    rb(t1, t1)
    a(f'v_mul_f32 v{t1}, v{vN}, v{t1}')
    rb(t1, t1)
    a(f'v_add_f32 v{t1}, v{t1}, v{t0}')
    a(f'v_cvt_pk_bf16_f32 v{t1}, v{t1}, v{t1}')
    a(f'ds_write_b32 v{vXW}, v{t1}')
    a('s_waitcnt lgkmcnt(0)')
    a(f'ds_read_b128 {vr(vH,4)}, v{vXR}')
    a(f'ds_read_b128 {vr(vH+4,4)}, v{vXR} offset:16')
    a('s_waitcnt lgkmcnt(0)')
    diag_gemv([vWQ + 4 * k for k in range(8)], [vH + k for k in range(8)])
    tile_reduce(L_TR2, vB1)
    a('s_barrier')
    stamp(6)
    V.reset(keep_mark)
    vW = V.get(48)
    vFG = V.get(16); vFU = V.get(16); vFD = V.get(16)
    vDg = V.get(4); vDu = V.get(4); vDd = vW
    vGA = V.get(2); vSB = V.get(2); vCB = V.get(2)
    for k in range(4):
        a(f'global_load_dwordx4 {vr(vFD+4*k,4)}, v{vMB}, {sr(pWM,2)} nt')
        if k < 3: a(f'v_add_u32 v{vMB}, 6144, v{vMB}')
    diag_gemv([vFD + 4 * k for k in range(4)], [vSd + k for k in range(4)], [f's_waitcnt vmcnt({3-k})' for k in range(4)])
    tile_reduce(L_TR1, vB2)
    a(f's_cmp_lg_u32 {sr(sM)}, 0')
    a('s_barrier')
    a('s_cbranch_scc1 L_COMB')
    stamp(1)
    if pf:
        for k in range(4):
            a(f'global_load_dwordx4 {vr(vFG+4*k,4)}, v{vPFA}, {sr(pWG,2)}' + (' nt' if pfpol else ''))
            a(f'global_load_dwordx4 {vr(vFU+4*k,4)}, v{vPFA}, {sr(pWU,2)}' + (' nt' if pfpol else ''))
            if k < 3: a(f'v_add_u32 v{vPFA}, {8*3584}, v{vPFA}')
    for k in range(4):
        a(f'global_load_dwordx4 {vr(vW+32+4*k,4)}, v{aDN}, {sr(pWD,2)} nt')
        if k < 3: a(f'v_add_u32 v{aDN}, 4096, v{aDN}')
    for k in range(4):
        a(f'global_load_dwordx4 {vr(vW+4*k,4)}, v{aNR}, {sr(pWG,2)} nt')
        a(f'global_load_dwordx4 {vr(vW+16+4*k,4)}, v{aNR}, {sr(pWU,2)} nt')
        if k < 3: a(f'v_add_u32 v{aNR}, {32*3584}, v{aNR}')
    a(f's_mov_b32 {sr(sM)}, 0')
    a(f's_mov_b32 {sr(sM+1)}, 0x80000000')
    order = [(vW + 32 + 4 * k, 8192 + 1024 * k) for k in range(4)]
    for k in range(4): order += [(vW + 4 * k, 1024 * k), (vW + 16 + 4 * k, 4096 + 1024 * k)]
    for k, (r, off) in enumerate(order):
        a(f's_waitcnt vmcnt({11-k})')
        a(f'ds_write_b128 v{vSt}, {vr(r,4)} offset:{off}')
        if k == 5:
            for tau in range(8):
                a(f'ds_read_b64_tr_b16 {vr(vFD+2*tau,2)}, v{aTD} offset:{8192+32*tau}')
    a('s_waitcnt lgkmcnt(0)')
    for m, base in ((0, vFG), (1, vFU)):
        for sg in range(4):
            for aa in range(2):
                a(f'ds_read_b64_tr_b16 {vr(base+4*sg+2*aa,2)}, v{aTG} offset:{4096*m+1024*sg+128*aa}')
    a(f'v_and_b32 v{vX1+1}, {HI}, v{vX1}')
    a(f'v_lshlrev_b32 v{vX1}, 16, v{vX1}')
    stamp(7)
    if exp: a('s_branch L_A_done')
    poll([ld2(vGA, vE6, -2048), ld2(vSB, vE6), ld2(vCB, vE6, 2048)])
    a(f'v_add_f32 v{vCB}, 1.0, v{vCB}')
    a(f'v_add_f32 v{vCB+1}, 1.0, v{vCB+1}')
    rb2(vCB, vCB, vCB + 1, t0)
    stamp(8)
    def post4(k):
        if k % 2 == 1:
            b = vG + 8 * (k // 2)
            pkadd(b, b, b + 4); pkadd(b + 2, b + 2, b + 6)
            if k in (3, 7):
                pkadd(b - 8, b - 8, b); pkadd(b - 6, b - 6, b + 2)
            if k == 7:
                pkadd(vG, vG, vG + 16); pkadd(vG + 2, vG + 2, vG + 18)
    poll([ld4(vG + 4 * k, vE4 + k // 2, -2048 + 4096 * (k % 2)) for k in range(8)], post4)
    stamp(9)
    a(f'v_permlane32_swap_b32 v{vG}, v{vG+2}')
    a(f'v_permlane32_swap_b32 v{vG+1}, v{vG+3}')
    pkadd(vG, vG, vG + 2)
    rb2(vG, vG, vG + 1, t0)
    a(f'v_pk_mul_f32 {vr(vG,2)}, {vr(vG,2)}, {vr(vGA,2)}')
    rb2(vG, vG, vG + 1, t0)
    pkadd(vG, vG, vX1)
    rb2(vX1, vG, vG + 1, t0)
    a(f'v_readfirstlane_b32 {T0}, v{vX1}')
    a(f'v_subrev_f32 v{vG}, {T0}, v{vX1}')
    a(f'v_subrev_f32 v{vG+1}, {T0}, v{vX1+1}')
    a(f'v_add_f32 v{t0}, v{vG}, v{vG+1}')
    a(f'v_mul_f32 v{t1}, v{vG}, v{vG}')
    a(f'v_fmac_f32 v{t1}, v{vG+1}, v{vG+1}')
    red63([t0, t1])
    a(f'v_mul_f32 v{t2}, 0x3c000000, v{t0}')
    a(f'v_add_f32 v{vG}, {T0}, v{t2}')
    a(f'v_fma_f32 v{vG+1}, -v{t2}, v{t0}, v{t1}')
    a(f's_mov_b64 exec, {sr(sM,2)}')
    a(f'ds_write_b64 v{vSTW}, {vr(vG,2)} offset:{L_ST}')
    a('s_mov_b64 exec, -1')
    a('s_waitcnt lgkmcnt(0)')
    stamp(13)
    a('s_barrier')
    stamp(14)
    a(f'ds_read_b64 {vr(vG,2)}, v{vSTR} offset:{L_ST}')
    a('s_waitcnt lgkmcnt(0)')
    a(f'v_add_f32_dpp v{t0}, v{vG}, v{vG} {Q1} {DPP}')
    dpp_red('v_add_f32', [t0], Q2)
    a(f'v_mul_f32 v{t0}, 0x3e800000, v{t0}')
    a(f'v_sub_f32 v{t1}, v{vG}, v{t0}')
    a(f'v_mul_f32 v{t2}, 0x43000000, v{t1}')
    a(f'v_fmac_f32 v{vG+1}, v{t1}, v{t2}')
    rb(t0, t0)
    dpp_red('v_add_f32', [vG + 1], Q1)
    a(f'v_sub_f32 v{vG+2}, v{vX1}, v{t0}')
    a(f'v_sub_f32 v{vG+3}, v{vX1+1}, v{t0}')
    dpp_red('v_add_f32', [vG + 1], Q2)
    a(f'v_mul_f32 v{t2}, 0x3b000000, v{vG+1}')
    rb(t2, t2)
    a(f'v_add_f32 v{t2}, {EPS:#x}, v{t2}')
    rb(t2, t2)
    a(f'v_sqrt_f32 v{t2}, v{t2}')
    rb2(vG + 2, vG + 2, vG + 3, t3)
    rb(t2, t2)
    a(f'v_rcp_f32 v{t4}, v{t2}')
    a(f'v_mul_f32 v{vG+4}, v{vG+2}, v{t4}')
    a(f'v_mul_f32 v{vG+5}, v{vG+3}, v{t4}')
    a(f'v_fma_f32 v{vG+2}, -v{vG+4}, v{t2}, v{vG+2}')
    a(f'v_fma_f32 v{vG+3}, -v{vG+5}, v{t2}, v{vG+3}')
    a(f'v_fmac_f32 v{vG+4}, v{vG+2}, v{t4}')
    a(f'v_fmac_f32 v{vG+5}, v{vG+3}, v{t4}')
    rb2(vG + 4, vG + 4, vG + 5, t3)
    a(f'v_pk_mul_f32 {vr(vG+4,2)}, {vr(vG+4,2)}, {vr(vCB,2)}')
    rb2(vG + 4, vG + 4, vG + 5, t3)
    pkadd(vG + 4, vG + 4, vSB)
    a(f'v_cvt_pk_bf16_f32 v{t3}, v{vG+4}, v{vG+5}')
    a(f'ds_write_b32 v{vH2W}, v{t3}')
    a('s_waitcnt lgkmcnt(0)')
    for sg in range(4): a(f'ds_read_b128 {vr(vA+4*sg,4)}, v{vH2R} offset:{64*sg}')
    for sg in range(4):
        a(f's_waitcnt lgkmcnt({3-sg})')
        a(f'v_mfma_f32_16x16x32_bf16 {vr(vDg,4)}, {vr(vA+4*sg,4)}, {vr(vFG+4*sg,4)}, ' + ('0' if sg == 0 else vr(vDg, 4)))
        a(f'v_mfma_f32_16x16x32_bf16 {vr(vDu,4)}, {vr(vA+4*sg,4)}, {vr(vFU+4*sg,4)}, ' + ('0' if sg == 0 else vr(vDu, 4)))
    a('s_mov_b32 exec_hi, 0')
    a(f'v_cndmask_b32 v{t0}, v{vDg}, v{vDu}, {sr(sQ1,2)}')
    a(f'ds_write_b32 v{vGUW}, v{t0}')
    a('s_mov_b64 exec, -1')
    a('s_waitcnt lgkmcnt(0)')
    a('s_barrier')
    stamp(10)
    a(f'ds_read_b128 {vr(vG,4)}, v{vGUR}')
    a('s_waitcnt lgkmcnt(0)')
    for ctl in (Q1, Q2): dpp_red('v_add_f32', [vG, vG + 1, vG + 2, vG + 3], ctl)
    a(f'v_cvt_pk_bf16_f32 v{t0}, v{vG}, v{vG+1}')
    a(f'v_cvt_pk_bf16_f32 v{t1}, v{vG+2}, v{vG+3}')
    a(f'v_lshlrev_b32 v{vG}, 16, v{t0}')
    a(f'v_and_b32 v{vG+1}, {HI}, v{t0}')
    a(f'v_lshlrev_b32 v{vG+2}, 16, v{t1}')
    a(f'v_and_b32 v{vG+3}, {HI}, v{t1}')
    for k in range(4): a(f'v_mul_f32_dpp v{vG+4+k}, v{vG+k}, v{vG+k} row_ror:8 {DPP}')
    a(f'v_cvt_pk_bf16_f32 v{vA}, v{vG+4}, v{vG+5}')
    a(f'v_cvt_pk_bf16_f32 v{vA+1}, v{vG+6}, v{vG+7}')
    for tau in range(8):
        a(f'v_mfma_f32_16x16x16_bf16 {vr(vDd+4*tau,4)}, {vr(vA,2)}, {vr(vFD+2*tau,2)}, 0')
    for hlf, tt in ((0, t0), (1, t1)):
        b = vDd + 16 * hlf
        a(f'v_cndmask_b32 v{tt}, v{b}, v{b+4}, {sr(sQ1,2)}')
        a(f'v_cndmask_b32 v{tt}, v{tt}, v{b+8}, {sr(sQ2,2)}')
        a(f'v_cndmask_b32 v{tt}, v{tt}, v{b+12}, {sr(sQ3,2)}')
        tag(tt)
        a(f'global_store_dword v{vE5}, v{tt}, {WS} offset:{256*hlf} sc1')
    stamp(11)
    finish()

    a.label('L_COMB')
    a(f's_lshl_b32 {T0}, {J}, 2')
    a(f's_add_u32 {FI}, {T0}, {I}')
    a(f's_sub_u32 {FI}, {FI}, 28')
    a(f's_add_u32 {T1}, {FI}, 112')
    a(f's_lshl_b32 {T1}, {T1}, 11')
    a(f's_lshl_b32 {T2}, {W}, 9')
    a(f's_add_u32 {T1}, {T1}, {T2}')
    a(f's_add_u32 {T1}, {T1}, {E5}')
    a(f'v_lshl_add_u32 v{t3}, v{vL}, 2, {T1}')
    a(f'global_store_dword v{t3}, v{vT}, {WS} sc1')
    a(f'global_store_dword v{t3}, v{vT}, {WS} offset:256 sc1')
    a(f's_cmp_ge_u32 {W}, 2')
    a('s_cbranch_scc1 L_comb_done')
    a(f's_lshl_b32 {T0}, {FI}, 1')
    a(f's_add_u32 {T0}, {T0}, {W}')
    a(f's_lshl_b32 {T1}, {T0}, 10')
    a(f's_add_u32 {T1}, {T1}, {E7}')
    a(f'v_add_u32 v{t0}, {T1}, v{vL16}')
    a(f's_lshl_b32 {T1}, {T0}, 8')
    a(f's_add_u32 {T1}, {T1}, {E6}')
    a(f'v_lshl_add_u32 v{t1}, v{vC16}, 2, v{vR}')
    a(f'v_lshl_add_u32 v{t1}, v{t1}, 2, {T1}')
    stamp(7)
    poll([ld4(vG, t0)])
    tred4([vG])
    rb(vG, vG)
    a(f'v_or_b32 v{vG}, v{vG}, v{vT}')
    a(f'global_store_dword v{t1}, v{vG}, {WS} sc1')
    stamp(8)
    a.label('L_comb_done')
    finish()

    V.reset(common_mark)
    hAd = V.get(6); hX = V.get()
    a.label('L_helperA')
    if exp == 2: a('s_endpgm')
    sS = Y
    a(f'v_bfe_u32 v{t3}, v{vL}, 4, 1')
    a(f'v_lshrrev_b32 v{t4}, 5, v{vL}')
    a(f'v_lshl_add_u32 v{vR}, v{t3}, 1, v{t4}')
    a(f's_mov_b32 {HI}, 0xffff0000')
    a(f'v_bfe_u32 v{t0}, v{vL}, 2, 2')
    a(f'v_lshlrev_b32 v{t0}, 10, v{t0}')
    a(f'v_lshl_add_u32 v{t0}, v{t4}, 9, v{t0}')
    a(f'v_lshl_add_u32 v{t0}, v{t3}, 6, v{t0}')
    a(f'v_and_b32 v{t1}, 3, v{vL}')
    a(f'v_lshl_add_u32 v{t0}, v{t1}, 4, v{t0}')
    a(f's_lshl_b32 {T0}, {J}, 12')
    a(f's_add_u32 {T0}, {T0}, {E2}')
    a(f'v_add_u32 v{hAd}, {T0}, v{t0}')
    a('s_waitcnt lgkmcnt(0)')
    a(f'global_load_dword v{vE}, v{vZ}, {WS} sc1')
    a('s_waitcnt vmcnt(0)')
    a(f'v_add_u32 v{vE}, 1, v{vE}')
    a(f'v_and_b32 v{vT}, 0xff, v{vE}')
    poll([ld4(vG + 8 * u + 4 * i, hAd, 256 * u + 128 * i) for u in range(2) for i in range(2)])
    for k in range(4): pkadd(vG + 2 * k, vG + 2 * k, vG + 8 + 2 * k)
    for k in range(4): a(f'v_cvt_pk_bf16_f32 v{vA+k}, v{vG+2*k}, v{vG+2*k+1}')
    a(f'ds_write_b128 v{vL16}, {vr(vA,4)} offset:{L_Q}')
    stamp(2)
    a(f's_cmp_ge_u32 {sS}, 2')
    a('s_waitcnt lgkmcnt(0)')
    a('s_barrier')
    a('s_cbranch_scc1 L_A_done')
    a(f's_lshl_b32 {FI}, {J}, 1')
    a(f's_add_u32 {FI}, {FI}, {sS}')
    a(f's_lshl_b32 {T0}, {FI}, 7')
    a(f'v_lshlrev_b32 v{t0}, 11, v{vRHO}')
    a(f'v_lshl_add_u32 v{t0}, v{vC8}, 4, v{t0}')
    a(f'v_add_u32 v{t0}, {T0}, v{t0}')
    a(f'v_lshl_add_u32 v{t1}, v{vC8}, 2, v{vR}')
    a(f'v_add_u32 v{hAd}, {E4}, v{t0}')
    a(f'v_add_u32 v{hAd+1}, 16384, v{hAd}')
    a(f'v_lshl_add_u32 v{t2}, v{t1}, 2, {T0}')
    a(f'v_add_u32 v{hAd+2}, {E6+3072}, v{t2}')
    a(f'v_lshrrev_b32 v{hAd+3}, 1, v{t2}')
    a(f'v_lshlrev_b32 v{hAd+4}, 2, v{t1}')
    a(f'v_mov_b32 v{hX}, 0')
    a(f's_mov_b32 {sr(sM)}, 0x00ff00ff')
    a(f's_mov_b32 {sr(sM+1)}, 0x00ff00ff')
    a('s_barrier')
    a('s_barrier')
    a(f'global_load_short_d16_hi v{hX}, v{hAd+3}, {sr(pX,2)}')
    poll([ld1(vG + 8, hAd + 2, -3072), ld1(vG + 9, hAd + 2, 3072), ld4(vG, hAd), ld4(vG + 4, hAd + 1)])
    pkadd(vG, vG, vG + 4); pkadd(vG + 2, vG + 2, vG + 6)
    tred4([vG])
    dpp_red('v_add_f32', [vG], 'row_ror:8')
    rb(vG, vG)
    a(f'v_mul_f32 v{vG}, v{vG+8}, v{vG}')
    rb(vG, vG)
    a(f'v_add_f32 v{vG}, v{hX}, v{vG}')
    rb(hX, vG)
    stamp(11)
    a('s_barrier')
    for k in range(4): a(f'ds_read_b32 v{vG+k}, v{hAd+4} offset:{L_FIN+128*k}')
    a('s_waitcnt lgkmcnt(0)')
    pkadd(vG, vG, vG + 2)
    a(f'v_add_f32 v{vG}, v{vG}, v{vG+1}')
    rb(vG, vG)
    a(f'v_mul_f32 v{vG}, v{vG+9}, v{vG}')
    rb(vG, vG)
    a(f'v_add_f32 v{vG}, v{hX}, v{vG}')
    a(f'v_cvt_pk_bf16_f32 v{vG}, v{vG}, v{vG}')
    a(f's_mov_b64 exec, {sr(sM,2)}')
    a(f'global_store_short v{hAd+3}, v{vG}, {sr(pOUT,2)}')
    stamp(12)
    a(f's_cmp_lg_u32 {FI}, 0')
    a('s_cbranch_scc1 L_A_done')
    a('s_mov_b64 exec, 1')
    a(f'v_mov_b32 v{t0}, 0')
    a(f'global_store_dword v{t0}, v{vE}, {WS} sc1')
    a('s_branch L_A_done')

    V.reset(a_mark)
    vAd = V.get(1)
    a.label('L_A0')
    if exp == 1: a('s_endpgm')
    a(f's_cmp_eq_u32 {W}, 4')
    a('s_cbranch_scc1 L_helperA')
    a(f'v_bfe_u32 v{t0}, v{vL}, 2, 2')
    a(f'v_and_b32 v{t3}, 3, v{vL}')
    a(f'v_lshlrev_b32 v{t0}, 8, v{t0}')
    a(f'v_lshl_add_u32 v{t0}, v{vG4}, 6, v{t0}')
    a(f'v_lshl_add_u32 v{vKo}, v{t3}, 4, v{t0}')
    a(f'v_add_u32 v{vKo+1}, 8192, v{vKo}')
    a(f'v_add_u32 v{aV2}, 8192, v{vL16}')
    a(f's_lshl_b32 {T0}, {J}, 24')
    a(f's_lshl_b32 {T1}, {Y}, 16')
    a(f's_lshl_b32 {T2}, {W}, 14')
    a(f's_add_u32 {T0}, {T0}, {T1}')
    a(f's_add_u32 {T0}, {T0}, {T2}')
    a(f's_add_u32 {T0}, {T0}, {(65536-4096)*256+4096}')
    a('s_waitcnt lgkmcnt(0)')
    stamp(1)
    a(f's_add_u32 {sr(pK)}, {sr(pK)}, {T0}')
    a(f's_addc_u32 {sr(pK+1)}, {sr(pK+1)}, 0')
    a(f'global_load_dword v{vE}, v{vZ}, {WS} sc1')
    if adelay >= 1: a('s_waitcnt vmcnt(0)')
    if adelay >= 2:
        a(f'global_load_dword v{vE}, v{vZ}, {WS} offset:0 sc1')
        a(f'global_load_dword v{t3}, v{vZ}, {sr(pOUT,2)} sc1')
        a('s_waitcnt vmcnt(0)')
    for k in range(16):
        a(f'global_load_dwordx4 {vr(vK+4*k,4)}, v{vKo+k//8}, {sr(pK,2)} offset:{1024*(k%8)-4096} nt')
    a(f's_add_u32 {sr(pV)}, {sr(pV)}, {T0}')
    a(f's_addc_u32 {sr(pV+1)}, {sr(pV+1)}, 0')
    for k in range(vsplit):
        a(f'global_load_dwordx4 {vr(vV+4*k,4)}, v{vL16 if k<8 else aV2}, {sr(pV,2)} offset:{1024*(k%8)-4096} nt')

    a(f'v_bfe_u32 v{t3}, v{vL}, 4, 1')
    a(f'v_lshrrev_b32 v{t4}, 5, v{vL}')
    a(f'v_lshl_add_u32 v{vR}, v{t3}, 1, v{t4}')
    common_consts()
    a(f'v_and_b32 v{t0}, 1, v{vL}')
    a(f'v_lshlrev_b32 v{t0}, 4, v{t0}')
    a(f'v_mov_b32 v{t1}, 0xffff')
    a(f'v_lshlrev_b32 v{t0}, v{t0}, v{t1}')
    a(f'v_and_b32 v{t1}, 2, v{vL}')
    a(f'v_cmp_eq_u32 vcc, 0, v{t1}')
    a(f'v_cndmask_b32 v{vN0}, 0, v{t0}, vcc')
    a(f'v_cndmask_b32 v{vN1}, v{t0}, 0, vcc')
    for sq, val in ((sQ1, 0x22222222), (sQ2, 0x44444444), (sQ3, 0x88888888)):
        a(f's_mov_b32 {sr(sq)}, {val:#x}'); a(f's_mov_b32 {sr(sq+1)}, {val:#x}')
    a(f's_mov_b32 {sr(sSC)}, {SCALE:#x}')
    a(f's_mov_b32 {sr(sSC+1)}, {SCALE:#x}')
    a(f's_and_b32 {T0}, {sS}, 1')
    a(f's_lshl_b32 {T0}, {T0}, 1')
    a(f's_lshr_b32 {T1}, {W}, 1')
    a(f's_add_u32 {sr(sM)}, {T0}, {T1}')
    a(f's_and_b32 {sr(sM+1)}, {W}, 1')
    a(f's_lshl_b32 {T0}, {J}, 9')
    a(f's_lshl_b32 {T1}, {sr(sM)}, 7')
    a(f's_add_u32 {T0}, {T0}, {T1}')
    a(f's_lshl_b32 {T1}, {sr(sM+1)}, 2')
    a(f's_add_u32 {T0}, {T0}, {T1}')
    a(f's_lshl_b32 {T0}, {T0}, 10')
    a(f's_lshr_b32 {T1}, {sS}, 1')
    a(f's_lshl_b32 {T1}, {T1}, 7')
    a(f's_add_u32 {T0}, {T0}, {T1}')
    a(f'v_lshlrev_b32 v{t0}, 14, v{vRHO}')
    a(f'v_lshl_add_u32 v{t0}, v{vC8}, 4, v{t0}')
    a(f'v_add_u32 v{vKo}, {T0}, v{t0}')
    a(f'v_add_u32 v{vKo+1}, 8192, v{vKo}')
    aE3, aML, aRw, aE4 = vPF, vPF + 1, vPF + 2, vPF + 3
    aMLw, aMLr, aRr, aE3s, aMLs = vAd, t9, t7, t6, t5
    a(f's_lshl_b32 {T0}, {J}, 15')
    a(f's_lshl_b32 {T1}, {sr(sM)}, 9')
    a(f's_add_u32 {T0}, {T0}, {T1}')
    a(f's_lshl_b32 {T1}, {sr(sM+1)}, 8')
    a(f's_add_u32 {T0}, {T0}, {T1}')
    a(f's_add_u32 {T0}, {T0}, {E3}')
    a(f'v_lshlrev_b32 v{t0}, 11, v{vG4}')
    a(f'v_lshl_add_u32 v{t0}, v{vC16}, 4, v{t0}')
    a(f'v_add_u32 v{aE3}, {T0}, v{t0}')
    a(f's_lshl_b32 {T0}, {J}, 13')
    a(f's_lshl_b32 {T1}, {sr(sM)}, 7')
    a(f's_add_u32 {T0}, {T0}, {T1}')
    a(f's_add_u32 {T0}, {T0}, {E3ML+4096}')
    a(f'v_lshl_add_u32 v{aML}, v{vG4}, 9, {T0}')
    a(f's_lshl_b32 {T1}, {W}, 11')
    a(f'v_add_u32 v{aRw}, {T1}, v{vL16}')
    a(f's_lshl_b32 {T0}, {W}, 3')
    a(f'v_lshl_add_u32 v{aMLw}, v{vL}, 3, {T0}')
    a(f's_lshl_b32 {T1}, {W}, 5')
    a(f'v_and_b32 v{t0}, 3, v{vL}')
    a(f'v_lshl_add_u32 v{aMLr}, v{t0}, 3, {T1}')
    a(f'v_and_b32 v{t0}, 31, v{vL}')
    a(f'v_lshlrev_b32 v{t0}, 3, v{t0}')
    a(f'v_lshl_add_u32 v{t0}, v{t4}, 10, v{t0}')
    a(f's_lshl_b32 {T1}, {W}, 8')
    a(f'v_add_u32 v{aRr}, {T1}, v{t0}')
    a(f's_lshl_b32 {T1}, {J}, 4')
    a(f's_add_u32 {T1}, {T1}, {sS}')
    a(f's_lshl_b32 {T2}, {T1}, 2')
    a(f's_add_u32 {T2}, {T2}, {W}')
    a(f's_lshl_b32 {T2}, {T2}, 7')
    a(f's_add_u32 {T2}, {T2}, {E3ML}')
    a(f'v_mov_b32 v{aMLs}, {T2}')
    a(f's_lshl_b32 {T1}, {T1}, 11')
    a(f's_lshl_b32 {T0}, {W}, 9')
    a(f's_add_u32 {T1}, {T1}, {T0}')
    a(f's_add_u32 {T1}, {T1}, {E3}')
    a(f'v_lshl_add_u32 v{aE3s}, v{vL}, 3, {T1}')
    a(f's_lshl_b32 {T0}, {J}, 1')
    a(f's_and_b32 {T1}, {sS}, 1')
    a(f's_add_u32 {T0}, {T0}, {T1}')
    a(f's_lshl_b32 {T0}, {T0}, 11')
    a(f's_lshr_b32 {T1}, {sS}, 1')
    a(f's_lshl_b32 {T1}, {T1}, 8')
    a(f's_add_u32 {T0}, {T0}, {T1}')
    a(f's_add_u32 {T0}, {T0}, {E4}')
    a(f'v_lshl_add_u32 v{t0}, v{vC16}, 2, v{vR}')
    a(f'v_lshl_add_u32 v{aE4}, v{t0}, 2, {T0}')
    a(f's_waitcnt vmcnt({16+vsplit})')
    a(f'v_add_u32 v{vE}, 1, v{vE}')
    a(f'v_and_b32 v{vT}, 0xff, v{vE}')
    stamp(2)
    a('s_barrier')
    stamp(3)
    a(f'ds_read_b128 {vr(vQ,4)}, v{vL16} offset:{L_Q}')
    for k in range(vsplit, 16):
        a(f'global_load_dwordx4 {vr(vV+4*k,4)}, v{vL16 if k<8 else aV2}, {sr(pV,2)} offset:{1024*(k%8)-4096} nt')
    a('s_waitcnt vmcnt(16) lgkmcnt(0)')
    stamp(4)
    zS = vD
    def smfma(k): a(f'v_mfma_f32_16x16x32_bf16 {vr(vS+4*(k%4),4)}, {vr(vK+4*k,4)}, {vr(vQ,4)}, 0')
    def sdpp(k):
        d = vS + 4 * (k % 4); o = vG + k
        a(f'v_mov_b32_dpp v{o}, v{d} quad_perm:[0,0,0,0] {DPP}')
        for r in range(1, 4): a(f'v_add_f32_dpp v{o}, v{d+r}, v{o} quad_perm:[{r},{r},{r},{r}] {DPP}')
    LEAD = 3
    for k in range(LEAD): smfma(k)
    for k in range(16):
        if k + LEAD < 16: smfma(k + LEAD)
        sdpp(k)
        if k % 4 == 3:
            z = zS + k // 4; b = vG + k - 3
            a(f'v_cndmask_b32 v{z}, v{b}, v{b+1}, {sr(sQ1,2)}')
            a(f'v_cndmask_b32 v{z}, v{z}, v{b+2}, {sr(sQ2,2)}')
            a(f'v_cndmask_b32 v{z}, v{z}, v{b+3}, {sr(sQ3,2)}')
    zM, zL = vG + 28, vG + 29
    zP = vG + 8
    a(f'v_cvt_pk_bf16_f32 v{t0}, v{zS}, v{zS+1}')
    a(f'v_cvt_pk_bf16_f32 v{t1}, v{zS+2}, v{zS+3}')
    a(f'v_lshlrev_b32 v{vG}, 16, v{t0}')
    a(f'v_and_b32 v{vG+1}, {HI}, v{t0}')
    a(f'v_lshlrev_b32 v{vG+2}, 16, v{t1}')
    a(f'v_and_b32 v{vG+3}, {HI}, v{t1}')
    a(f'v_pk_mul_f32 {vr(vG,2)}, {vr(vG,2)}, {sr(sSC,2)}')
    a(f'v_pk_mul_f32 {vr(vG+2,2)}, {vr(vG+2,2)}, {sr(sSC,2)}')
    a(f'v_cvt_pk_bf16_f32 v{t0}, v{vG}, v{vG+1}')
    a(f'v_cvt_pk_bf16_f32 v{t1}, v{vG+2}, v{vG+3}')
    a(f'v_lshlrev_b32 v{vG}, 16, v{t0}')
    a(f'v_and_b32 v{vG+1}, {HI}, v{t0}')
    a(f'v_lshlrev_b32 v{vG+2}, 16, v{t1}')
    a(f'v_and_b32 v{vG+3}, {HI}, v{t1}')
    a(f'v_max3_f32 v{zM}, v{vG}, v{vG+1}, v{vG+2}')
    a(f'v_max_f32 v{zM}, v{zM}, v{vG+3}')
    dpp_red('v_max_f32', [zM], Q1); dpp_red('v_max_f32', [zM], Q2)
    swap_red('v_max_f32', [zM], 16, [t1]); swap_red('v_max_f32', [zM], 32, [t1])
    for k in range(4): a(f'v_sub_f32 v{vG+k}, v{vG+k}, v{zM}')
    for k in range(4): a(f'v_mul_f32 v{vG+k}, {sr(sLOG2E)}, v{vG+k}')
    for k in range(4): a(f'v_exp_f32 v{vG+k}, v{vG+k}')
    for k in range(4): a(f'v_cvt_pk_bf16_f32 v{zP+k}, v{vG+k}, v{vG+k}')
    pkadd(vG, vG, vG + 2)
    a(f'v_add_f32 v{zL}, v{vG}, v{vG+1}')
    stamp(5)
    for k in range(8):
        a(f'global_load_dwordx4 {vr(vWO+4*k,4)}, v{vKo+k//4}, {sr(pWO,2)} offset:{1024*(k%4)} nt')
    lsteps = [lambda: dpp_red('v_add_f32', [zL], Q1), lambda: dpp_red('v_add_f32', [zL], Q2),
              lambda: a(f'v_mov_b32 v{t1}, v{zL}'),
              lambda: (a(f'v_permlane16_swap_b32 v{zL}, v{t1}'), a(f'v_add_f32 v{zL}, v{zL}, v{t1}')),
              lambda: a(f'v_mov_b32 v{t1}, v{zL}'),
              lambda: (a(f'v_permlane32_swap_b32 v{zL}, v{t1}'), a(f'v_add_f32 v{zL}, v{zL}, v{t1}'))]
    for p in range(8):
        ab = vA + 4 * (p % 4)
        for k in range(2):
            tt = 2 * p + k; src = zP + tt // 4; q = tt & 3
            a(f'v_and_b32_dpp v{ab+2*k}, v{src}, v{vN0} quad_perm:[{q},{q},{q},{q}] {DPP}')
            a(f'v_and_b32_dpp v{ab+2*k+1}, v{src}, v{vN1} quad_perm:[{q},{q},{q},{q}] {DPP}')
        a(f's_waitcnt vmcnt({8+14-2*p})')
        if p == 7: stamp(14)
        a(f'v_swap_b32 v{vV+8*p+2}, v{vV+8*p+4}')
        a(f'v_swap_b32 v{vV+8*p+3}, v{vV+8*p+5}')
        if p < 6: lsteps[p]()
        a(f'v_mfma_f32_16x16x32_bf16 {vr(vO,4)}, {vr(ab,4)}, {vr(vV+8*p,4)}, ' + ('0' if p == 0 else vr(vO, 4)))
        a(f'v_mfma_f32_16x16x32_bf16 {vr(vO+4,4)}, {vr(ab,4)}, {vr(vV+8*p+4,4)}, ' + ('0' if p == 0 else vr(vO + 4, 4)))
    stamp(6)
    a('s_mov_b64 exec, 0x1111')
    a(f'ds_write_b64 v{aMLw}, {vr(zM,2)} offset:{L_ML}')
    a('s_mov_b64 exec, -1')
    a(f'ds_write_b128 v{aRw}, {vr(vO,4)} offset:{L_BIG}')
    a(f'ds_write_b128 v{aRw}, {vr(vO+4,4)} offset:{L_BIG+1024}')
    a('s_waitcnt lgkmcnt(0)')
    a('s_barrier')
    a(f'ds_read_b64 {vr(zM,2)}, v{aMLr} offset:{L_ML}')
    for k in range(4): a(f'ds_read_b64 {vr(vG+2*k,2)}, v{aRr} offset:{L_BIG+2048*k}')
    a('s_waitcnt lgkmcnt(4)')
    zA = vG + 12
    a(f'v_max_f32_dpp v{zA}, v{zM}, v{zM} {Q1} {DPP}')
    dpp_red('v_max_f32', [zA], Q2)
    a(f'v_sub_f32 v{zM}, v{zM}, v{zA}')
    a(f'v_mul_f32 v{zM}, {sr(sLOG2E)}, v{zM}')
    a(f'v_exp_f32 v{zM}, v{zM}')
    a(f'v_mul_f32 v{zA+1}, v{zM}, v{zL}')
    a('s_waitcnt lgkmcnt(0)')
    for k in range(4):
        op = 'v_mul_f32_dpp' if k == 0 else 'v_fmac_f32_dpp'
        a(f'{op} v{vG+8}, v{zM}, v{vG+2*k} quad_perm:[{k},{k},{k},{k}] {DPP}')
        a(f'{op} v{vG+9}, v{zM}, v{vG+2*k+1} quad_perm:[{k},{k},{k},{k}] {DPP}')
        if k == 0: dpp_red('v_add_f32', [zA + 1], Q1)
        if k == 2: dpp_red('v_add_f32', [zA + 1], Q2)
    tag(vG + 8); tag(vG + 9)
    a(f'global_store_dwordx2 v{aE3s}, {vr(vG+8,2)}, {WS} sc1')
    tag(zA); tag(zA + 1)
    a('s_mov_b64 exec, 1')
    a(f'global_store_dwordx2 v{aMLs}, {vr(zA,2)}, {WS} sc1')
    a('s_mov_b64 exec, -1')
    stamp(7)
    a(f'v_add_u32 v{t0}, 8192, v{aE3}')
    a(f'v_add_u32 v{t1}, 16384, v{aE3}')
    a(f'v_add_u32 v{t2}, 24576, v{aE3}')
    if diag:
        a('s_waitcnt vmcnt(0)')
        stamp(8)
    ml = vG + 16
    poll([ld2(ml + 2 * k, aML, 2048 * k - 4096) for k in range(4)] +
         [ld4(vG + 4 * k, [aE3, t0, t1, t2][k]) for k in range(4)])
    stamp(9)
    a(f'v_max3_f32 v{zM}, v{ml}, v{ml+2}, v{ml+4}')
    a(f'v_max_f32 v{zM}, v{zM}, v{ml+6}')
    swap_red('v_max_f32', [zM], 16, [t1]); swap_red('v_max_f32', [zM], 32, [t1])
    for k in range(4): a(f'v_sub_f32 v{ml+2*k}, v{ml+2*k}, v{zM}')
    for k in range(4): a(f'v_mul_f32 v{ml+2*k}, {sr(sLOG2E)}, v{ml+2*k}')
    for k in range(4): a(f'v_exp_f32 v{ml+2*k}, v{ml+2*k}')
    a(f'v_mul_f32 v{zL}, v{ml}, v{ml+1}')
    sel = 'op_sel:[0,0,0] op_sel_hi:[1,0,1]'
    a(f'v_pk_mul_f32 {vr(vG,2)}, {vr(vG,2)}, {vr(ml,2)} op_sel:[0,0] op_sel_hi:[1,0]')
    a(f'v_pk_mul_f32 {vr(vG+2,2)}, {vr(vG+2,2)}, {vr(ml,2)} op_sel:[0,0] op_sel_hi:[1,0]')
    for k in range(1, 4):
        a(f'v_fmac_f32 v{zL}, v{ml+2*k}, v{ml+2*k+1}')
        a(f'v_pk_fma_f32 {vr(vG,2)}, {vr(vG+4*k,2)}, {vr(ml+2*k,2)}, {vr(vG,2)} {sel}')
        a(f'v_pk_fma_f32 {vr(vG+2,2)}, {vr(vG+4*k+2,2)}, {vr(ml+2*k,2)}, {vr(vG+2,2)} {sel}')
    a(f'v_mov_b32 v{t1}, v{zL}')
    a(f'v_permlane32_swap_b32 v{vG}, v{vG+1}')
    a(f'v_permlane32_swap_b32 v{vG+2}, v{vG+3}')
    a(f'v_permlane16_swap_b32 v{zL}, v{t1}')
    a(f'v_add_f32 v{vG}, v{vG}, v{vG+1}'); a(f'v_add_f32 v{vG+2}, v{vG+2}, v{vG+3}')
    a(f'v_add_f32 v{zL}, v{zL}, v{t1}')
    a(f'v_mov_b32 v{t1}, v{zL}')
    a(f'v_permlane16_swap_b32 v{vG}, v{vG+2}')
    a(f'v_permlane32_swap_b32 v{zL}, v{t1}')
    a(f'v_add_f32 v{vG}, v{vG}, v{vG+2}')
    a(f'v_add_f32 v{zL}, v{zL}, v{t1}')
    a(f'v_rcp_f32 v{zL}, v{zL}')
    a(f'v_mul_f32 v{vG}, v{vG}, v{zL}')
    a(f'v_cvt_pk_bf16_f32 v{vG}, v{vG}, v{vG}')
    a(f'ds_write_b32 v{vXW}, v{vG}')
    a('s_waitcnt lgkmcnt(0)')
    a(f'ds_read_b128 {vr(vG+8,4)}, v{vXR}')
    a(f'ds_read_b128 {vr(vG+12,4)}, v{vXR} offset:16')
    a('s_waitcnt lgkmcnt(0)')
    diag_gemv([vWO + 4 * k for k in range(8)], [vG + 8 + k for k in range(8)])
    tile_reduce(L_TR1, aE4)
    stamp(10)
    a(f's_cmp_ge_u32 {sS}, 2')
    a('s_cbranch_scc1 L_A_done')
    a(f's_lshl_b32 {FI}, {J}, 1')
    a(f's_add_u32 {FI}, {FI}, {sS}')
    a(f's_lshl_b32 {T0}, {FI}, 7')
    a(f's_lshl_b32 {T1}, {W}, 16')
    a(f's_add_u32 {T0}, {T0}, {T1}')
    a(f's_add_u32 {T0}, {T0}, {E5}')
    a(f'v_lshlrev_b32 v{t0}, 11, v{vRHO}')
    a(f'v_lshl_add_u32 v{t0}, v{vC8}, 4, v{t0}')
    a(f'v_add_u32 v{t0}, {T0}, v{t0}')
    for k in range(1, 4): a(f'v_add_u32 v{t[k]}, {16384*k}, v{t0}')
    a(f'v_lshl_add_u32 v{t4}, v{vC8}, 2, v{vR}')
    a(f's_lshl_b32 {T1}, {W}, 7')
    a(f'v_lshl_add_u32 v{t4}, v{t4}, 2, {T1}')
    def post5(k):
        if k == 1: pkadd(vG, vG, vG + 4); pkadd(vG + 2, vG + 2, vG + 6)
        if k == 2: pkadd(vG, vG, vG + 8); pkadd(vG + 2, vG + 2, vG + 10)
        if k == 3: pkadd(vG, vG, vG + 12); pkadd(vG + 2, vG + 2, vG + 14)
    poll([ld4(vG + 4 * k, t[k]) for k in range(4)], post5)
    stamp(11)
    tred4([vG])
    dpp_red('v_add_f32', [vG], 'row_ror:8')
    a(f'ds_write_b32 v{t4}, v{vG} offset:{L_FIN}')
    a('s_waitcnt lgkmcnt(0)')
    a('s_barrier')
    stamp(12)
    a.label('L_A_done')
    finish()
    a.label('L_end')
    a('s_endpgm')

    nv = (V.hi + 7) // 8 * 8
    head = [f'; @launch grid=(256,1,1) block=(320,1,1) lds={LDS_BYTES}',
            '.amdgcn_target "amdgcn-amd-amdhsa--gfx950"', '.text', f'.globl {KNAME}', '.p2align 8', f'.type {KNAME},@function']
    tail = [f'.fill ({code_kb}*1024 - (. - {KNAME}))/4, 4, 0xbf810000',
            '.section .rodata,"a"', '.p2align 6', f'.amdhsa_kernel {KNAME}',
            f'  .amdhsa_next_free_vgpr {nv}', '  .amdhsa_next_free_sgpr 100', f'  .amdhsa_accum_offset {nv}',
            '  .amdhsa_group_segment_fixed_size 0', '  .amdhsa_kernarg_size 112', '  .amdhsa_user_sgpr_count 2',
            '  .amdhsa_user_sgpr_kernarg_segment_ptr 1', '  .amdhsa_system_sgpr_workgroup_id_x 1',
            '  .amdhsa_float_denorm_mode_32 3', '.end_amdhsa_kernel']
    return '\n'.join(head) + '\n' + a.text() + '\n'.join(tail) + '\n', nv, a.nnop

if __name__ == '__main__':
    out = sys.argv[1]
    kw = {}
    for x in sys.argv[2:]:
        k, v = x.split('='); kw[k] = int(v)
    kw.setdefault('code_kb', 15 if kw.get('diag') else 13)
    s, nv, nn = gen(**kw)
    open(out, 'w').write(s)
    print('vgprs', nv, 'nops', nn)
```

```python
import sys
sys.path.insert(0, 'gen')
from asmlib import Asm, RegAlloc, vr, sr

KNAME = 'adaLN_cond__sliding_block_cached__glu_gated_bilinear__decode_kernel'
LOG2E = 0x3fb8aa3b
SCALE = 0x3db504f3
EPS = 0x3727c5ac
DPP = 'row_mask:0xf bank_mask:0xf'
Q1, Q2, HM, RM = 'quad_perm:[1,0,3,2]', 'quad_perm:[2,3,0,1]', 'row_half_mirror', 'row_mirror'

E1, E2, E3, E3ML, E4, E6, E5, E7 = 0x1000, 0x10000, 0x20000, 0x60000, 0x80000, 0x90000, 0xA0000, 0x70000
STAMPS = 0x10000000
SPIN = 200000

L_TR1, L_TR2 = 0, 2048
L_XD = 4096
L_Q = 5120
L_ML = 6144
L_FIN = 6272
L_ST = 6784
L_GU = 6912
L_H2 = 7424
L_BIG = 8448
LDS_BYTES = L_BIG + 49152

def gen(diag=False, code_kb=12, adelay=0, h1wait=4, pfpol=1, pf=1, exp=0, vsplit=16, local3=0, sep=0, dbg=0):
    a = Asm()
    S = RegAlloc('s', 32, 68)
    V = RegAlloc('v', 1, 256)
    pX, pK, pV, pWQ, pWO, pWG, pWU = 4, 6, 8, 10, 12, 16, 18
    pWD, pC, pWM, pOUT, pWS = 20, 22, 24, 26, 30
    WS = sr(pWS, 2)
    sJ, sY, sW, sT0, sT1, sT2, sT3, sCNT = [S.get() for _ in range(8)]
    sLOG2E, sHI, sFF, sFI = [S.get() for _ in range(4)]
    sUSE = S.get(2); sQ1 = S.get(2); sQ2 = S.get(2); sQ3 = S.get(2); sPC = S.get(2); sM = S.get(2)
    sSC = S.get(2); sE = S.get()
    T0, T1, T2, T3 = sr(sT0), sr(sT1), sr(sT2), sr(sT3)
    J, Y, W, HI = sr(sJ), sr(sY), sr(sW), sr(sHI)
    sSTAMP = 68
    NST = 15
    def stamp(n):
        if diag: a(f's_memrealtime s[{sSTAMP+2*n}:{sSTAMP+2*n+1}]')
    vL = V.get(); vRHO = V.get(); vC8 = V.get(); vL16 = V.get(); vT = V.get(); vE = V.get()
    vR = V.get(); vG4 = V.get(); vC16 = V.get(); vZ = V.get()
    vM = V.get(4)
    vTRW = V.get(); vXW = V.get(); vXR = V.get()
    vPF = V.get(4); vDUM = V.get()
    t = [V.get() for _ in range(10)]
    t0, t1, t2, t3, t4, t5, t6, t7, t8, t9 = t
    vG = V.get(32)
    vA = V.get(16)
    vD = V.get(4)
    common_mark = V.mark()

    def rb(dst, src):
        a(f'v_cvt_pk_bf16_f32 v{dst}, v{src}, v{src}')
        a(f'v_and_b32 v{dst}, {HI}, v{dst}')
    def rb2(d0, s0, s1, tmp):
        a(f'v_cvt_pk_bf16_f32 v{tmp}, v{s0}, v{s1}')
        a(f'v_lshlrev_b32 v{d0}, 16, v{tmp}')
        a(f'v_and_b32 v{d0+1}, {HI}, v{tmp}')
    def swap_red(op, regs, kind, tmps):
        for r, x in zip(regs, tmps): a(f'v_mov_b32 v{x}, v{r}')
        for r, x in zip(regs, tmps): a(f'v_permlane{kind}_swap_b32 v{r}, v{x}')
        for r, x in zip(regs, tmps): a(f'{op} v{r}, v{r}, v{x}')
    def dpp_red(op, regs, ctl):
        for r in regs: a(f'{op}_dpp v{r}, v{r}, v{r} {ctl} {DPP}')
    def allred(op, regs, tmps):
        for ctl in (Q1, Q2, HM, RM): dpp_red(op, regs, ctl)
        swap_red(op, regs, 16, tmps); swap_red(op, regs, 32, tmps)
    def red63(regs):
        for ctl in (Q1, Q2, HM, RM): dpp_red('v_add_f32', regs, ctl)
        for r in regs: a(f'v_add_f32_dpp v{r}, v{r}, v{r} row_bcast:15 row_mask:0xa bank_mask:0xf')
        for r in regs: a(f'v_add_f32_dpp v{r}, v{r}, v{r} row_bcast:31 row_mask:0xc bank_mask:0xf')
    def tred4(groups):
        for b in groups:
            a(f'v_permlane32_swap_b32 v{b}, v{b+1}'); a(f'v_permlane32_swap_b32 v{b+2}, v{b+3}')
        for b in groups:
            a(f'v_add_f32 v{b}, v{b}, v{b+1}'); a(f'v_add_f32 v{b+2}, v{b+2}, v{b+3}')
        for b in groups: a(f'v_permlane16_swap_b32 v{b}, v{b+2}')
        for b in groups: a(f'v_add_f32 v{b}, v{b}, v{b+2}')
    def pkadd(d, x, y): a(f'v_pk_add_f32 {vr(d,2)}, {vr(x,2)}, {vr(y,2)}')
    pollid = [0]
    deferred = []
    def poll(loads, post=None):
        n = pollid[0]; pollid[0] += 1
        N = len(loads)
        a(f's_mov_b32 {sr(sCNT)}, {SPIN}')
        for txt, regs in loads: a(txt)
        for k, (txt, regs) in enumerate(loads):
            a.label(f'L_chk{n}_{k}')
            a(f's_waitcnt vmcnt({N-1-k})')
            for r in regs: a(f'v_xor_b32 v{r}, v{vT}, v{r}')
            rs = list(regs)
            if len(rs) == 4:
                a(f'v_or3_b32 v{t8}, v{rs[0]}, v{rs[1]}, v{rs[2]}')
                a(f'v_and_or_b32 v{t8}, v{t8}, {sr(sFF)}, 0' if False else f'v_or_b32 v{t8}, v{t8}, v{rs[3]}')
            elif len(rs) == 2:
                a(f'v_or_b32 v{t8}, v{rs[0]}, v{rs[1]}')
            src = t8 if len(rs) > 1 else rs[0]
            a(f'v_cmp_ne_u32_sdwa vcc, v{src}, v{vZ} src0_sel:BYTE_0 src1_sel:DWORD')
            a(f's_cbranch_vccnz L_rty{n}_{k}')
            a.label(f'L_ok{n}_{k}')
            if post: post(k)
        def handlers():
            for k in range(N):
                a.label(f'L_rty{n}_{k}')
                a(f's_sub_u32 {sr(sCNT)}, {sr(sCNT)}, 1')
                a(f's_cbranch_scc1 L_ok{n}_{k}')
                for txt, regs in loads[k:]: a(txt)
                a(f's_branch L_chk{n}_{k}')
        deferred.append(handlers)
    def flush_handlers():
        while deferred: deferred.pop(0)()
    def ld4(r, addr, off=0): return (f'global_load_dwordx4 {vr(r,4)}, v{addr}, {WS} offset:{off} sc1', list(range(r, r + 4)))
    def ld2(r, addr, off=0): return (f'global_load_dwordx2 {vr(r,2)}, v{addr}, {WS} offset:{off} sc1', [r, r + 1])
    def ld1(r, addr, off=0): return (f'global_load_dword v{r}, v{addr}, {WS} offset:{off} sc1', [r])
    def tag(r): a(f'v_bfi_b32 v{r}, {sr(sFF)}, v{vT}, v{r}')
    def diag_gemv(frags, xregs, waits=None):
        n = len(frags)
        def build(k):
            ab = vA + 4 * (k % 4)
            for r in range(4): a(f'v_and_b32 v{ab+r}, v{xregs[k]}, v{vM+r}')
        build(0)
        for k in range(n):
            if k + 1 < n: build(k + 1)
            if waits: a(waits[k])
            a(f'v_mfma_f32_16x16x32_bf16 {vr(vD,4)}, {vr(vA+4*(k%4),4)}, {vr(frags[k],4)}, ' + ('0' if k == 0 else vr(vD, 4)))
    trid = [0]
    def tile_reduce(trbase, vdst_off):
        n = trid[0]; trid[0] += 1
        a(f's_mov_b64 exec, {sr(sUSE,2)}')
        a(f'ds_write_b128 v{vTRW}, {vr(vD,4)} offset:{trbase}')
        a('s_mov_b64 exec, -1')
        a(f's_cmp_lg_u32 {W}, 0')
        a('s_waitcnt lgkmcnt(0)')
        a('s_barrier')
        a(f's_cbranch_scc1 L_trskip{n}')
        for k in range(2): a(f'ds_read_b128 {vr(vG+4*k,4)}, v{vL16} offset:{trbase+1024*k}')
        a('s_waitcnt lgkmcnt(0)')
        pkadd(vG, vG, vG + 4); pkadd(vG + 2, vG + 2, vG + 6)
        tred4([vG])
        tag(vG)
        a(f'global_store_dword v{vdst_off}, v{vG}, {WS} sc1')
        a.label(f'L_trskip{n}')
    def silu_dup(dst, src, tmp):
        a(f'v_mul_f32 v{tmp}, {sr(sLOG2E)}, v{src}')
        a(f'v_exp_f32 v{tmp}, -v{tmp}')
        a(f'v_add_f32 v{tmp}, 1.0, v{tmp}')
        a(f'v_rcp_f32 v{tmp}, v{tmp}')
        a(f'v_mul_f32 v{tmp}, v{src}, v{tmp}')
        a(f'v_cvt_pk_bf16_f32 v{dst}, v{tmp}, v{tmp}')
    fin = [0]
    def finish():
        if diag and dbg:
            n = fin[0]; fin[0] += 1
            a('s_waitcnt lgkmcnt(0)')
            a(f's_and_b32 {T0}, s2, 0x7f')
            a(f's_or_b32 {T0}, {T0}, {W}')
            a(f's_cmp_lg_u32 {T0}, 0')
            a(f's_cbranch_scc1 L_end')
            a(f's_lshr_b32 {T0}, s2, 7')
            a(f's_xor_b32 {T0}, {T0}, 1')
            a(f's_lshl_b32 {T0}, {T0}, 5')
            a(f'v_mov_b32 v{t0}, {T0}')
            a('s_mov_b64 exec, 1')
            sel = {1: [0, 2, 3, 5, 6, 7, 9, 11], 2: [0, 1, 2, 3, 4, 5, 6, 7]}[dbg]
            selA = {1: [0, 2, 3, 6, 7, 9, 10, 12], 2: [0, 1, 2, 3, 4, 5, 6, 7]}[dbg]
            a(f's_cmp_ge_u32 s2, 128')
            for k in range(8):
                a(f's_cselect_b32 {T1}, s{sSTAMP+2*sel[k]}, s{sSTAMP+2*selA[k]}')
                a(f'v_mov_b32 v{t1}, {T1}')
                a(f'global_store_dword v{t0}, v{t1}, s[28:29] offset:{4*k}')
        elif diag:
            a('s_waitcnt lgkmcnt(0)')
            a(f's_lshl_b32 {T0}, s2, 3')
            a(f's_add_u32 {T0}, {T0}, {W}')
            a(f's_lshl_b32 {T0}, {T0}, 7')
            a(f's_add_u32 {T0}, {T0}, {STAMPS:#x}')
            a(f'v_mov_b32 v{t0}, {T0}')
            a('s_mov_b64 exec, 1')
            for n in range(NST):
                a(f'v_mov_b32 v{t1}, s{sSTAMP+2*n}')
                a(f'global_store_dword v{t0}, v{t1}, {WS} offset:{4*n}')
        a('s_endpgm')
        flush_handlers()
    def helper_stamp(slot):
        if diag:
            a(f's_memrealtime s[{sSTAMP}:{sSTAMP+1}]')
            a(f's_lshl_b32 {T0}, s2, 7')
            a(f's_add_u32 {T0}, {T0}, {STAMPS+4*slot:#x}')
            a(f'v_mov_b32 v{t0}, {T0}')
            a('s_waitcnt lgkmcnt(0)')
            a(f'v_mov_b32 v{t1}, s{sSTAMP}')
            a(f'global_store_dword v{t0}, v{t1}, {WS}')
    def epoch_load():
        if sep == 0: a(f'global_load_dword v{vE}, v{vZ}, {WS} sc1')
        elif sep == 1: a(f's_load_dword {sr(sE)}, {WS}, 0'); a(f'global_load_dword v{vE}, v{vZ}, {sr(pX,2)}')
        elif sep == 2: a(f'global_load_dword v{vE}, v{vZ}, {WS}')
    def epoch_use():
        if sep == 1:
            a('s_waitcnt lgkmcnt(0)')
            a(f'v_mov_b32 v{vE}, {sr(sE)}')
        a(f'v_add_u32 v{vE}, 1, v{vE}')
        a(f'v_and_b32 v{vT}, 0xff, v{vE}')
    def common_consts():
        a(f's_mov_b32 {sr(sLOG2E)}, {LOG2E:#x}')
        a(f's_mov_b32 {HI}, 0xffff0000')
        a(f's_movk_i32 {sr(sFF)}, 0xff')
        a(f's_mov_b32 {sr(sUSE)}, 0x00ff00ff')
        a(f's_mov_b32 {sr(sUSE+1)}, 0xff00ff00')
        a(f'v_and_b32 v{t5}, 1, v{vL}')
        a(f'v_lshlrev_b32 v{t5}, 4, v{t5}')
        a(f'v_mov_b32 v{t6}, 0xffff')
        a(f'v_lshlrev_b32 v{t5}, v{t5}, v{t6}')
        a(f'v_lshrrev_b32 v{t6}, 1, v{vC8}')
        for r in range(4):
            a(f'v_cmp_eq_u32 vcc, {r}, v{t6}')
            a(f'v_cndmask_b32 v{vM+r}, 0, v{t5}, vcc')
        a(f'v_lshrrev_b32 v{t5}, 5, v{vL}')
        a(f'v_bfe_u32 v{t6}, v{vL}, 4, 1')
        a(f'v_lshlrev_b32 v{t5}, 8, v{t5}')
        a(f'v_lshl_add_u32 v{t5}, v{t6}, 4, v{t5}')
        a(f'v_lshl_add_u32 v{t5}, v{vC8}, 5, v{t5}')
        a(f's_lshl_b32 {T3}, {W}, 9')
        a(f'v_add_u32 v{vTRW}, {T3}, v{t5}')
        a(f's_lshl_b32 {T3}, {W}, 8')
        a(f's_add_u32 {T3}, {T3}, {L_XD}')
        a(f'v_lshl_add_u32 v{t5}, v{vC16}, 2, v{vR}')
        a(f'v_lshl_add_u32 v{vXW}, v{t5}, 2, {T3}')
        a(f'v_lshl_add_u32 v{vXR}, v{vRHO}, 5, {T3}')

    a.raw(f'{KNAME}:')
    a('s_load_dwordx16 s[4:19], s[0:1], 0')
    a('s_load_dwordx8 s[20:27], s[0:1], 64')
    a('s_load_dwordx4 s[28:31], s[0:1], 96')
    a(f's_getpc_b64 {sr(sPC,2)}')
    a.label('L_pc')
    a('s_cmp_ge_u32 s2, 256')
    a('s_cbranch_scc1 L_end')
    a(f's_lshr_b32 {Y}, s2, 3')
    a(f'v_lshrrev_b32 v{t0}, 6, v0')
    a(f's_mul_i32 {T0}, {Y}, 5')
    a(f'v_add_u32 v{t1}, {T0}, v{t0}')
    a(f'v_min_u32 v{t1}, {code_kb*8-2}, v{t1}')
    a(f'v_lshlrev_b32 v{t1}, 7, v{t1}')
    a(f'global_load_dword v{vDUM}, v{t1}, {sr(sPC,2)}')
    if diag:
        for n in range(NST): a(f's_mov_b64 s[{sSTAMP+2*n}:{sSTAMP+2*n+1}], 0')
    stamp(0)
    a(f'v_and_b32 v{vL}, 63, v0')
    a(f'v_readfirstlane_b32 {W}, v{t0}')
    a(f's_and_b32 {J}, s2, 7')
    a(f'v_lshlrev_b32 v{vL16}, 4, v{vL}')
    a(f'v_lshrrev_b32 v{vRHO}, 3, v{vL}')
    a(f'v_and_b32 v{vC8}, 7, v{vL}')
    a(f'v_lshrrev_b32 v{vG4}, 4, v{vL}')
    a(f'v_and_b32 v{vC16}, 15, v{vL}')
    a(f'v_mov_b32 v{vZ}, 0')
    a(f's_cmp_lt_u32 {Y}, 16')
    a('s_cbranch_scc1 L_A0')
    a(f's_cmp_eq_u32 {W}, 4')
    a('s_cbranch_scc1 L_end')

    vK = V.get(64); vV = V.get(64); vS = vA
    vWO = V.get(32)
    a_regs = dict(vKo=V.get(2), vN0=V.get(), vN1=V.get())
    vKo, vN0, vN1 = a_regs['vKo'], a_regs['vN0'], a_regs['vN1']
    aV2 = V.get()
    a_mark = V.mark()
    vQ = vG + 24; vO = vG + 16
    V.reset(common_mark)
    vSd = V.get(4); vB2 = V.get(); vMB = V.get(); vPFA = V.get()
    vE4 = V.get(4); vX1 = V.get(2); vE6 = V.get(); aNR = V.get(); aDN = V.get(); aTG = V.get(); aTD = V.get()
    vSt = V.get(); vH2W = V.get(); vH2R = V.get(); vGUW = V.get(); vGUR = V.get(); vE5 = V.get(); vSTR = V.get(); vSTW = V.get()
    keep_mark = V.mark()
    vCs = V.get(); vMT = V.get(8); vX = V.get(4); vXd = V.get(); vWQ = V.get(32)
    vB0 = V.get(); vB1 = V.get(); vH = V.get(8)
    I = Y
    a(f's_sub_u32 {I}, {Y}, 16')
    a(f's_lshl_b32 {T0}, {J}, 6')
    a(f's_lshl_b32 {T1}, {W}, 4')
    a(f's_add_u32 {T0}, {T0}, {T1}')
    a(f'v_lshl_add_u32 v{t0}, v{vRHO}, 1, {T0}')
    a(f'v_lshlrev_b32 v{t1}, 1, v{t0}')
    a(f'v_mul_u32_u24 v{t0}, 6144, v{t0}')
    a(f's_lshl_b32 {T2}, {I}, 7')
    a(f'v_lshl_add_u32 v{t0}, v{vC8}, 4, v{t0}')
    a(f'v_add_u32 v{t0}, {T2}, v{t0}')
    a(f'v_add_u32 v{t5}, 6144, v{t0}')
    a('s_waitcnt lgkmcnt(0)')
    stamp(1)
    a(f'global_load_dword v{vCs}, v{t1}, {sr(pC,2)}')
    a(f'global_load_dwordx4 {vr(vMT,4)}, v{t0}, {sr(pWM,2)} nt')
    a(f'global_load_dwordx4 {vr(vMT+4,4)}, v{t5}, {sr(pWM,2)} nt')
    epoch_load()
    a(f'v_bfe_u32 v{t3}, v{vL}, 4, 1')
    a(f'v_lshrrev_b32 v{t4}, 5, v{vL}')
    a(f'v_lshl_add_u32 v{vR}, v{t3}, 1, v{t4}')
    a(f's_and_b32 {T0}, {I}, 1')
    a(f's_lshl_b32 {T0}, {T0}, 8')
    a(f's_lshl_b32 {T1}, {W}, 6')
    a(f's_add_u32 {T0}, {T0}, {T1}')
    a(f'v_lshl_add_u32 v{t3}, v{vC16}, 2, v{vR}')
    a(f'v_add_lshl_u32 v{t3}, v{t3}, {T0}, 1')
    a(f'v_lshl_add_u32 v{t4}, v{vRHO}, 3, {T0}')
    a(f'v_lshlrev_b32 v{t4}, 13, v{t4}')
    a(f's_lshl_b32 {T1}, {J}, 10')
    a(f's_lshr_b32 {T2}, {I}, 1')
    a(f's_lshl_b32 {T2}, {T2}, 7')
    a(f's_add_u32 {T1}, {T1}, {T2}')
    a(f'v_lshl_add_u32 v{t4}, v{vC8}, 4, v{t4}')
    a(f'v_add_u32 v{t4}, {T1}, v{t4}')
    a(f'v_mov_b32 v{vXd}, 0')
    a(f's_and_b32 {T0}, {I}, 3')
    a(f's_lshl_b32 {T0}, {T0}, 7')
    a(f's_lshl_b32 {T1}, {W}, 5')
    a(f's_add_u32 {T0}, {T0}, {T1}')
    a(f'v_lshl_add_u32 v{vMB}, v{vRHO}, 2, {T0}')
    a(f'v_lshlrev_b32 v{t6}, 1, v{vMB}')
    a(f'v_and_b32 v{t7}, 31, v{vL}')
    a(f'v_lshrrev_b32 v{t5}, 5, v{vL}')
    a(f'v_lshlrev_b32 v{t7}, 3, v{t7}')
    a(f'v_lshl_add_u32 v{t7}, v{t5}, 2, v{t7}')
    a(f's_lshl_b32 {T1}, {W}, 8')
    a(f'v_add_u32 v{t7}, {T1}, v{t7}')
    a('s_barrier')
    a(f'global_load_dwordx4 {vr(vX,4)}, v{vL16}, {sr(pX,2)}')
    a(f'global_load_short_d16_hi v{vXd}, v{t3}, {sr(pX,2)}')
    a(f'global_load_dwordx2 {vr(vSd+2,2)}, v{t6}, {sr(pC,2)}')
    a(f'global_load_dword v{vX1}, v{t7}, {sr(pX,2)}')
    for k in range(8):
        a(f'global_load_dwordx4 {vr(vWQ+4*k,4)}, v{t4}, {sr(pWQ,2)} nt')
        if k < 7: a(f'v_add_u32 v{t4}, 8192, v{t4}')
    common_consts()
    a(f'v_lshl_add_u32 v{t6}, v{vC16}, 2, v{vR}')
    a(f's_lshl_b32 {T0}, {I}, 3')
    a(f's_add_u32 {T0}, {T0}, {J}')
    a(f's_lshl_b32 {T0}, {T0}, 8')
    a(f's_add_u32 {T0}, {T0}, {E1}')
    a(f'v_lshl_add_u32 v{vB0}, v{t6}, 2, {T0}')
    a('s_waitcnt vmcnt(15)')
    a(f'v_lshlrev_b32 v{t3}, 16, v{vCs}')
    a(f'v_and_b32 v{t4}, {HI}, v{vCs}')
    silu_dup(t0, t3, t5); silu_dup(t1, t4, t6)
    diag_gemv([vMT, vMT + 4], [t0, t1], ['s_waitcnt vmcnt(14)', 's_waitcnt vmcnt(12)'])
    stamp(2)
    epoch_use()
    tile_reduce(L_TR1, vB0)
    stamp(3)
    a('s_waitcnt vmcnt(8)')
    xs = vG
    for k in range(4):
        a(f'v_lshlrev_b32 v{xs+2*k}, 16, v{vX+k}')
        a(f'v_and_b32 v{xs+2*k+1}, {HI}, v{vX+k}')
    pkadd(xs + 8, xs, xs + 2); pkadd(xs + 10, xs + 4, xs + 6); pkadd(xs + 8, xs + 8, xs + 10)
    a(f'v_add_f32 v{t0}, v{xs+8}, v{xs+9}')
    allred('v_add_f32', [t0], [t1])
    a(f'v_mul_f32 v{t0}, 0x3b000000, v{t0}')
    for k in range(8): a(f'v_sub_f32 v{xs+k}, v{xs+k}, v{t0}')
    a(f'v_mul_f32 v{t2}, v{xs}, v{xs}')
    for k in range(1, 8): a(f'v_fmac_f32 v{t2}, v{xs+k}, v{xs+k}')
    allred('v_add_f32', [t2], [t1])
    a(f'v_mul_f32 v{t2}, 0x3b000000, v{t2}')
    vN = vXd
    rb(t2, t2); rb(t0, t0)
    a(f'v_add_f32 v{t2}, {EPS:#x}, v{t2}')
    a(f'v_sub_f32 v{t3}, v{vXd}, v{t0}')
    rb(t2, t2); rb(t3, t3)
    a(f'v_sqrt_f32 v{t2}, v{t2}')
    rb(t2, t2)
    a(f'v_rcp_f32 v{t4}, v{t2}')
    a(f'v_mul_f32 v{t5}, v{t3}, v{t4}')
    a(f'v_fma_f32 v{t3}, -v{t5}, v{t2}, v{t3}')
    a(f'v_fma_f32 v{t5}, v{t3}, v{t4}, v{t5}')
    rb(vN, t5)
    a(f'v_lshlrev_b32 v{t0}, 16, v{vSd+2}')
    a(f'v_and_b32 v{t1}, {HI}, v{vSd+2}')
    a(f'v_lshlrev_b32 v{t2}, 16, v{vSd+3}')
    a(f'v_and_b32 v{t3}, {HI}, v{vSd+3}')
    for k in range(4): silu_dup(vSd + k, t[k], t5)
    a(f's_lshl_b32 {T0}, {J}, 4')
    a(f's_add_u32 {T0}, {T0}, {I}')
    a(f's_lshr_b32 {T1}, {T0}, 2')
    a(f's_lshl_b32 {T1}, {T1}, 7')
    a(f's_add_u32 {T1}, {T1}, 2048')
    a(f'v_mul_u32_u24 v{vMB}, 6144, v{vMB}')
    a(f'v_lshl_add_u32 v{vMB}, v{vC8}, 4, v{vMB}')
    a(f'v_add_u32 v{vMB}, {T1}, v{vMB}')
    a(f's_lshl_b32 {T0}, {T0}, 8')
    a(f's_add_u32 {T0}, {T0}, {E7}')
    a(f'v_lshl_add_u32 v{t6}, v{vC16}, 2, v{vR}')
    a(f'v_lshl_add_u32 v{vB2}, v{t6}, 2, {T0}')
    a(f's_and_b32 {T0}, {I}, 1')
    a(f's_lshl_b32 {T0}, {T0}, 2')
    a(f's_add_u32 {T0}, {T0}, {W}')
    a(f's_lshl_b32 {T0}, {T0}, 11')
    a(f's_add_u32 {T0}, {T0}, {E1}')
    a(f'v_add_u32 v{vH}, {T0}, v{vL16}')
    a(f'v_add_u32 v{vH+1}, {8*2048}, v{vH}')
    a(f'v_and_b32 v{t0}, 1, v{vL}')
    a(f'v_bfe_u32 v{t1}, v{vL}, 1, 3')
    a(f'v_lshlrev_b32 v{t0}, 5, v{t0}')
    a(f'v_lshl_add_u32 v{t0}, v{t1}, 2, v{t0}')
    a(f'v_add_u32 v{t0}, v{t0}, v{vR}')
    a(f's_lshl_b32 {T0}, {J}, 4')
    a(f's_add_u32 {T0}, {T0}, {I}')
    a(f's_lshl_b32 {T0}, {T0}, 8')
    a(f's_add_u32 {T0}, {T0}, {E2}')
    a(f'v_lshl_add_u32 v{vB1}, v{t0}, 2, {T0}')
    FI = sr(sFI)
    a(f's_lshl_b32 {T0}, {J}, 2')
    a(f's_mul_i32 {T1}, {J}, 3')
    a(f's_add_u32 {T1}, {T1}, 4')
    a(f's_cmp_ge_u32 {J}, 4')
    a(f's_cselect_b32 {T0}, {T1}, {T0}')
    a(f's_cselect_b32 {T2}, 12, 16')
    a(f's_lshl_b32 {T0}, {T0}, 2')
    a(f's_add_u32 {FI}, {T0}, {I}')
    a(f's_cmp_ge_u32 {I}, {T2}')
    a(f's_cselect_b32 {sr(sM)}, 1, 0')
    a(f's_and_b32 {T0}, {FI}, 3')
    a(f's_lshl_b32 {T0}, {T0}, 7')
    a(f's_lshl_b32 {T1}, {W}, 5')
    a(f's_add_u32 {T0}, {T0}, {T1}')
    a(f'v_add_u32 v{vPFA}, {T0}, v{vRHO}')
    a(f'v_mul_u32_u24 v{vPFA}, 3584, v{vPFA}')
    a(f's_lshr_b32 {T1}, {FI}, 2')
    a(f's_lshl_b32 {T1}, {T1}, 7')
    a(f'v_lshl_add_u32 v{vPFA}, v{vC8}, 4, v{vPFA}')
    a(f'v_add_u32 v{vPFA}, {T1}, v{vPFA}')
    a(f'v_lshrrev_b32 v{t0}, 1, v{vL}')
    a(f's_lshl_b32 {T0}, {W}, 7')
    a(f'v_add_u32 v{t0}, {T0}, v{t0}')
    a(f'v_mul_u32_u24 v{t0}, 3584, v{t0}')
    a(f'v_and_b32 v{t1}, 1, v{vL}')
    a(f'v_lshl_add_u32 v{t0}, v{t1}, 4, v{t0}')
    a(f's_lshl_b32 {T1}, {FI}, 5')
    a(f'v_add_u32 v{aNR}, {T1}, v{t0}')
    a(f's_lshl_b32 {T1}, {FI}, 14')
    a(f's_lshl_b32 {T2}, {W}, 8')
    a(f's_add_u32 {T1}, {T1}, {T2}')
    a(f'v_lshlrev_b32 v{t2}, 10, v{vG4}')
    a(f'v_lshl_add_u32 v{t2}, v{vC16}, 4, v{t2}')
    a(f'v_add_u32 v{aDN}, {T1}, v{t2}')
    a(f'v_and_b32 v{t4}, 31, v{vL}')
    a(f'v_lshrrev_b32 v{t5}, 5, v{vL}')
    a(f'v_lshlrev_b32 v{t5}, 1, v{t5}')
    a(f'v_lshl_add_u32 v{t5}, v{t4}, 2, v{t5}')
    a(f'v_add_lshl_u32 v{t6}, v{t5}, {T0}, 2')
    a(f'v_add_u32 v{vE6}, {E6+2048}, v{t6}')
    a(f's_add_u32 {T3}, {T2}, {L_H2}')
    a(f'v_lshl_add_u32 v{vH2W}, v{t5}, 1, {T3}')
    a(f'v_lshl_add_u32 v{vH2R}, v{vG4}, 4, {T3}')
    a(f's_add_u32 {T3}, {T0}, {L_GU}')
    a(f'v_lshl_add_u32 v{vGUW}, v{vL}, 2, {T3}')
    a(f'v_and_b32 v{t0}, 3, v{vL}')
    a(f'v_lshlrev_b32 v{vSTR}, 3, v{t0}')
    a(f'v_lshlrev_b32 v{t0}, 7, v{t0}')
    a(f'v_bfe_u32 v{t1}, v{vL}, 3, 1')
    a(f'v_lshl_add_u32 v{t0}, v{t1}, 6, v{t0}')
    a(f'v_lshl_add_u32 v{t0}, v{vG4}, 4, v{t0}')
    a(f'v_add_u32 v{vGUR}, {L_GU}, v{t0}')
    a(f's_lshl_b32 {T3}, {W}, 3')
    a(f'v_mov_b32 v{vSTW}, {T3}')
    a(f's_lshl_b32 {T2}, {W}, 9')
    a(f's_add_u32 {T3}, {T2}, {E4+4096-2048}')
    a(f'v_lshrrev_b32 v{t0}, 5, v{vL}')
    a(f'v_lshlrev_b32 v{t0}, 11, v{t0}')
    a(f'v_lshl_add_u32 v{t0}, v{t4}, 4, v{t0}')
    a(f'v_add_u32 v{vE4}, {T3}, v{t0}')
    for k in range(1, 4): a(f'v_add_u32 v{vE4+k}, {8192*k}, v{vE4}')
    a(f's_lshl_b32 {T3}, {FI}, 11')
    a(f's_add_u32 {T3}, {T3}, {T2}')
    a(f's_add_u32 {T3}, {T3}, {E5}')
    a(f'v_lshl_add_u32 v{vE5}, v{vL}, 2, {T3}')
    a(f's_mul_i32 {T2}, {W}, 12288')
    a(f's_add_u32 {T2}, {T2}, {L_BIG}')
    a(f'v_add_u32 v{vSt}, {T2}, v{vL16}')
    a(f'v_lshlrev_b32 v{t0}, 8, v{vG4}')
    a(f'v_lshl_add_u32 v{t0}, v{vC16}, 3, v{t0}')
    a(f'v_add_u32 v{aTG}, {T2}, v{t0}')
    a(f'v_lshrrev_b32 v{t1}, 2, v{vL}')
    a(f'v_and_b32 v{t2}, 3, v{vL}')
    a(f'v_lshlrev_b32 v{t1}, 8, v{t1}')
    a(f'v_lshl_add_u32 v{t1}, v{t2}, 3, v{t1}')
    a(f'v_add_u32 v{aTD}, {T2}, v{t1}')
    a(f's_mov_b32 {sr(sQ1)}, 0xffff0000')
    a(f's_mov_b32 {sr(sQ1+1)}, 0')
    a(f's_mov_b32 {sr(sQ2)}, 0')
    a(f's_mov_b32 {sr(sQ2+1)}, 0x0000ffff')
    a(f's_mov_b32 {sr(sQ3)}, 0')
    a(f's_mov_b32 {sr(sQ3+1)}, 0xffff0000')
    stamp(4)
    a(f's_waitcnt vmcnt({h1wait})')
    stamp(12)
    def post1(k):
        if k == 1: pkadd(vG, vG, vG + 4); pkadd(vG + 2, vG + 2, vG + 6)
        if k == 3: pkadd(vG + 8, vG + 8, vG + 12); pkadd(vG + 10, vG + 10, vG + 14)
    poll([ld4(vG, vH), ld4(vG + 4, vH, 1024), ld4(vG + 8, vH + 1), ld4(vG + 12, vH + 1, 1024)], post1)
    stamp(5)
    tred4([vG, vG + 8])
    rb2(t0, vG, vG + 8, t2)
    a(f'v_add_f32 v{t1}, 1.0, v{t1}')
    rb(t1, t1)
    a(f'v_mul_f32 v{t1}, v{vN}, v{t1}')
    rb(t1, t1)
    a(f'v_add_f32 v{t1}, v{t1}, v{t0}')
    a(f'v_cvt_pk_bf16_f32 v{t1}, v{t1}, v{t1}')
    a(f'ds_write_b32 v{vXW}, v{t1}')
    a('s_waitcnt lgkmcnt(0)')
    a(f'ds_read_b128 {vr(vH,4)}, v{vXR}')
    a(f'ds_read_b128 {vr(vH+4,4)}, v{vXR} offset:16')
    a('s_waitcnt lgkmcnt(0)')
    diag_gemv([vWQ + 4 * k for k in range(8)], [vH + k for k in range(8)])
    tile_reduce(L_TR2, vB1)
    a('s_barrier')
    stamp(6)
    V.reset(keep_mark)
    vW = V.get(48)
    vFG = V.get(16); vFU = V.get(16); vFD = V.get(16)
    vDg = V.get(4); vDu = V.get(4); vDd = vW
    vGA = V.get(2); vSB = V.get(2); vCB = V.get(2)
    for k in range(4):
        a(f'global_load_dwordx4 {vr(vFD+4*k,4)}, v{vMB}, {sr(pWM,2)} nt')
        if k < 3: a(f'v_add_u32 v{vMB}, 6144, v{vMB}')
    diag_gemv([vFD + 4 * k for k in range(4)], [vSd + k for k in range(4)], [f's_waitcnt vmcnt({3-k})' for k in range(4)])
    tile_reduce(L_TR1, vB2)
    a(f's_cmp_lg_u32 {sr(sM)}, 0')
    a('s_barrier')
    a('s_cbranch_scc1 L_COMB')
    stamp(1)
    if pf:
        for k in range(4):
            a(f'global_load_dwordx4 {vr(vFG+4*k,4)}, v{vPFA}, {sr(pWG,2)}' + (' nt' if pfpol else ''))
            a(f'global_load_dwordx4 {vr(vFU+4*k,4)}, v{vPFA}, {sr(pWU,2)}' + (' nt' if pfpol else ''))
            if k < 3: a(f'v_add_u32 v{vPFA}, {8*3584}, v{vPFA}')
    for k in range(4):
        a(f'global_load_dwordx4 {vr(vW+32+4*k,4)}, v{aDN}, {sr(pWD,2)} nt')
        if k < 3: a(f'v_add_u32 v{aDN}, 4096, v{aDN}')
    for k in range(4):
        a(f'global_load_dwordx4 {vr(vW+4*k,4)}, v{aNR}, {sr(pWG,2)} nt')
        a(f'global_load_dwordx4 {vr(vW+16+4*k,4)}, v{aNR}, {sr(pWU,2)} nt')
        if k < 3: a(f'v_add_u32 v{aNR}, {32*3584}, v{aNR}')
    a(f's_mov_b32 {sr(sM)}, 0')
    a(f's_mov_b32 {sr(sM+1)}, 0x80000000')
    order = [(vW + 32 + 4 * k, 8192 + 1024 * k) for k in range(4)]
    for k in range(4): order += [(vW + 4 * k, 1024 * k), (vW + 16 + 4 * k, 4096 + 1024 * k)]
    for k, (r, off) in enumerate(order):
        a(f's_waitcnt vmcnt({11-k})')
        a(f'ds_write_b128 v{vSt}, {vr(r,4)} offset:{off}')
        if k == 5:
            for tau in range(8):
                a(f'ds_read_b64_tr_b16 {vr(vFD+2*tau,2)}, v{aTD} offset:{8192+32*tau}')
    a('s_waitcnt lgkmcnt(0)')
    for m, base in ((0, vFG), (1, vFU)):
        for sg in range(4):
            for aa in range(2):
                a(f'ds_read_b64_tr_b16 {vr(base+4*sg+2*aa,2)}, v{aTG} offset:{4096*m+1024*sg+128*aa}')
    a(f'v_and_b32 v{vX1+1}, {HI}, v{vX1}')
    a(f'v_lshlrev_b32 v{vX1}, 16, v{vX1}')
    stamp(7)
    if exp: a('s_branch L_A_done')
    poll([ld2(vGA, vE6, -2048), ld2(vSB, vE6), ld2(vCB, vE6, 2048)])
    a(f'v_add_f32 v{vCB}, 1.0, v{vCB}')
    a(f'v_add_f32 v{vCB+1}, 1.0, v{vCB+1}')
    rb2(vCB, vCB, vCB + 1, t0)
    stamp(8)
    def post4(k):
        if k % 2 == 1:
            b = vG + 8 * (k // 2)
            pkadd(b, b, b + 4); pkadd(b + 2, b + 2, b + 6)
            if k in (3, 7):
                pkadd(b - 8, b - 8, b); pkadd(b - 6, b - 6, b + 2)
            if k == 7:
                pkadd(vG, vG, vG + 16); pkadd(vG + 2, vG + 2, vG + 18)
    poll([ld4(vG + 4 * k, vE4 + k // 2, -2048 + 4096 * (k % 2)) for k in range(8)], post4)
    stamp(9)
    a(f'v_permlane32_swap_b32 v{vG}, v{vG+2}')
    a(f'v_permlane32_swap_b32 v{vG+1}, v{vG+3}')
    pkadd(vG, vG, vG + 2)
    rb2(vG, vG, vG + 1, t0)
    a(f'v_pk_mul_f32 {vr(vG,2)}, {vr(vG,2)}, {vr(vGA,2)}')
    rb2(vG, vG, vG + 1, t0)
    pkadd(vG, vG, vX1)
    rb2(vX1, vG, vG + 1, t0)
    a(f'v_readfirstlane_b32 {T0}, v{vX1}')
    a(f'v_subrev_f32 v{vG}, {T0}, v{vX1}')
    a(f'v_subrev_f32 v{vG+1}, {T0}, v{vX1+1}')
    a(f'v_add_f32 v{t0}, v{vG}, v{vG+1}')
    a(f'v_mul_f32 v{t1}, v{vG}, v{vG}')
    a(f'v_fmac_f32 v{t1}, v{vG+1}, v{vG+1}')
    red63([t0, t1])
    a(f'v_mul_f32 v{t2}, 0x3c000000, v{t0}')
    a(f'v_add_f32 v{vG}, {T0}, v{t2}')
    a(f'v_fma_f32 v{vG+1}, -v{t2}, v{t0}, v{t1}')
    a(f's_mov_b64 exec, {sr(sM,2)}')
    a(f'ds_write_b64 v{vSTW}, {vr(vG,2)} offset:{L_ST}')
    a('s_mov_b64 exec, -1')
    a('s_waitcnt lgkmcnt(0)')
    stamp(13)
    a('s_barrier')
    stamp(14)
    a(f'ds_read_b64 {vr(vG,2)}, v{vSTR} offset:{L_ST}')
    a('s_waitcnt lgkmcnt(0)')
    a(f'v_add_f32_dpp v{t0}, v{vG}, v{vG} {Q1} {DPP}')
    dpp_red('v_add_f32', [t0], Q2)
    a(f'v_mul_f32 v{t0}, 0x3e800000, v{t0}')
    a(f'v_sub_f32 v{t1}, v{vG}, v{t0}')
    a(f'v_mul_f32 v{t2}, 0x43000000, v{t1}')
    a(f'v_fmac_f32 v{vG+1}, v{t1}, v{t2}')
    rb(t0, t0)
    dpp_red('v_add_f32', [vG + 1], Q1)
    a(f'v_sub_f32 v{vG+2}, v{vX1}, v{t0}')
    a(f'v_sub_f32 v{vG+3}, v{vX1+1}, v{t0}')
    dpp_red('v_add_f32', [vG + 1], Q2)
    a(f'v_mul_f32 v{t2}, 0x3b000000, v{vG+1}')
    rb(t2, t2)
    a(f'v_add_f32 v{t2}, {EPS:#x}, v{t2}')
    rb(t2, t2)
    a(f'v_sqrt_f32 v{t2}, v{t2}')
    rb2(vG + 2, vG + 2, vG + 3, t3)
    rb(t2, t2)
    a(f'v_rcp_f32 v{t4}, v{t2}')
    a(f'v_mul_f32 v{vG+4}, v{vG+2}, v{t4}')
    a(f'v_mul_f32 v{vG+5}, v{vG+3}, v{t4}')
    a(f'v_fma_f32 v{vG+2}, -v{vG+4}, v{t2}, v{vG+2}')
    a(f'v_fma_f32 v{vG+3}, -v{vG+5}, v{t2}, v{vG+3}')
    a(f'v_fmac_f32 v{vG+4}, v{vG+2}, v{t4}')
    a(f'v_fmac_f32 v{vG+5}, v{vG+3}, v{t4}')
    rb2(vG + 4, vG + 4, vG + 5, t3)
    a(f'v_pk_mul_f32 {vr(vG+4,2)}, {vr(vG+4,2)}, {vr(vCB,2)}')
    rb2(vG + 4, vG + 4, vG + 5, t3)
    pkadd(vG + 4, vG + 4, vSB)
    a(f'v_cvt_pk_bf16_f32 v{t3}, v{vG+4}, v{vG+5}')
    a(f'ds_write_b32 v{vH2W}, v{t3}')
    a('s_waitcnt lgkmcnt(0)')
    for sg in range(4): a(f'ds_read_b128 {vr(vA+4*sg,4)}, v{vH2R} offset:{64*sg}')
    for sg in range(4):
        a(f's_waitcnt lgkmcnt({3-sg})')
        a(f'v_mfma_f32_16x16x32_bf16 {vr(vDg,4)}, {vr(vA+4*sg,4)}, {vr(vFG+4*sg,4)}, ' + ('0' if sg == 0 else vr(vDg, 4)))
        a(f'v_mfma_f32_16x16x32_bf16 {vr(vDu,4)}, {vr(vA+4*sg,4)}, {vr(vFU+4*sg,4)}, ' + ('0' if sg == 0 else vr(vDu, 4)))
    a('s_mov_b32 exec_hi, 0')
    a(f'v_cndmask_b32 v{t0}, v{vDg}, v{vDu}, {sr(sQ1,2)}')
    a(f'ds_write_b32 v{vGUW}, v{t0}')
    a('s_mov_b64 exec, -1')
    a('s_waitcnt lgkmcnt(0)')
    a('s_barrier')
    stamp(10)
    a(f'ds_read_b128 {vr(vG,4)}, v{vGUR}')
    a('s_waitcnt lgkmcnt(0)')
    for ctl in (Q1, Q2): dpp_red('v_add_f32', [vG, vG + 1, vG + 2, vG + 3], ctl)
    a(f'v_cvt_pk_bf16_f32 v{t0}, v{vG}, v{vG+1}')
    a(f'v_cvt_pk_bf16_f32 v{t1}, v{vG+2}, v{vG+3}')
    a(f'v_lshlrev_b32 v{vG}, 16, v{t0}')
    a(f'v_and_b32 v{vG+1}, {HI}, v{t0}')
    a(f'v_lshlrev_b32 v{vG+2}, 16, v{t1}')
    a(f'v_and_b32 v{vG+3}, {HI}, v{t1}')
    for k in range(4): a(f'v_mul_f32_dpp v{vG+4+k}, v{vG+k}, v{vG+k} row_ror:8 {DPP}')
    a(f'v_cvt_pk_bf16_f32 v{vA}, v{vG+4}, v{vG+5}')
    a(f'v_cvt_pk_bf16_f32 v{vA+1}, v{vG+6}, v{vG+7}')
    for tau in range(8):
        a(f'v_mfma_f32_16x16x16_bf16 {vr(vDd+4*tau,4)}, {vr(vA,2)}, {vr(vFD+2*tau,2)}, 0')
    for hlf, tt in ((0, t0), (1, t1)):
        b = vDd + 16 * hlf
        a(f'v_cndmask_b32 v{tt}, v{b}, v{b+4}, {sr(sQ1,2)}')
        a(f'v_cndmask_b32 v{tt}, v{tt}, v{b+8}, {sr(sQ2,2)}')
        a(f'v_cndmask_b32 v{tt}, v{tt}, v{b+12}, {sr(sQ3,2)}')
        tag(tt)
        a(f'global_store_dword v{vE5}, v{tt}, {WS} offset:{256*hlf} sc1')
    stamp(11)
    finish()

    a.label('L_COMB')
    a(f's_lshl_b32 {T0}, {J}, 2')
    a(f's_add_u32 {FI}, {T0}, {I}')
    a(f's_sub_u32 {FI}, {FI}, 28')
    a(f's_add_u32 {T1}, {FI}, 112')
    a(f's_lshl_b32 {T1}, {T1}, 11')
    a(f's_lshl_b32 {T2}, {W}, 9')
    a(f's_add_u32 {T1}, {T1}, {T2}')
    a(f's_add_u32 {T1}, {T1}, {E5}')
    a(f'v_lshl_add_u32 v{t3}, v{vL}, 2, {T1}')
    a(f'global_store_dword v{t3}, v{vT}, {WS} sc1')
    a(f'global_store_dword v{t3}, v{vT}, {WS} offset:256 sc1')
    a(f's_cmp_ge_u32 {W}, 2')
    a('s_cbranch_scc1 L_comb_done')
    a(f's_lshl_b32 {T0}, {FI}, 1')
    a(f's_add_u32 {T0}, {T0}, {W}')
    a(f's_lshl_b32 {T1}, {T0}, 10')
    a(f's_add_u32 {T1}, {T1}, {E7}')
    a(f'v_add_u32 v{t0}, {T1}, v{vL16}')
    a(f's_lshl_b32 {T1}, {T0}, 8')
    a(f's_add_u32 {T1}, {T1}, {E6}')
    a(f'v_lshl_add_u32 v{t1}, v{vC16}, 2, v{vR}')
    a(f'v_lshl_add_u32 v{t1}, v{t1}, 2, {T1}')
    stamp(7)
    poll([ld4(vG, t0)])
    tred4([vG])
    rb(vG, vG)
    a(f'v_or_b32 v{vG}, v{vG}, v{vT}')
    a(f'global_store_dword v{t1}, v{vG}, {WS} sc1')
    stamp(8)
    a.label('L_comb_done')
    finish()

    V.reset(common_mark)
    hAd = V.get(6); hX = V.get()
    a.label('L_helperA')
    if exp == 2: a('s_endpgm')
    sS = Y
    a(f'v_bfe_u32 v{t3}, v{vL}, 4, 1')
    a(f'v_lshrrev_b32 v{t4}, 5, v{vL}')
    a(f'v_lshl_add_u32 v{vR}, v{t3}, 1, v{t4}')
    a(f's_mov_b32 {HI}, 0xffff0000')
    a(f'v_bfe_u32 v{t0}, v{vL}, 2, 2')
    a(f'v_lshlrev_b32 v{t0}, 10, v{t0}')
    a(f'v_lshl_add_u32 v{t0}, v{t4}, 9, v{t0}')
    a(f'v_lshl_add_u32 v{t0}, v{t3}, 6, v{t0}')
    a(f'v_and_b32 v{t1}, 3, v{vL}')
    a(f'v_lshl_add_u32 v{t0}, v{t1}, 4, v{t0}')
    a(f's_lshl_b32 {T0}, {J}, 12')
    a(f's_add_u32 {T0}, {T0}, {E2}')
    a(f'v_add_u32 v{hAd}, {T0}, v{t0}')
    a('s_waitcnt lgkmcnt(0)')
    epoch_load()
    a('s_waitcnt vmcnt(0)')
    epoch_use()
    poll([ld4(vG + 8 * u + 4 * i, hAd, 256 * u + 128 * i) for u in range(2) for i in range(2)])
    for k in range(4): pkadd(vG + 2 * k, vG + 2 * k, vG + 8 + 2 * k)
    for k in range(4): a(f'v_cvt_pk_bf16_f32 v{vA+k}, v{vG+2*k}, v{vG+2*k+1}')
    a(f'ds_write_b128 v{vL16}, {vr(vA,4)} offset:{L_Q}')
    stamp(2)
    a(f's_cmp_ge_u32 {sS}, 2')
    a('s_waitcnt lgkmcnt(0)')
    a('s_barrier')
    a('s_cbranch_scc1 L_A_done')
    a(f's_lshl_b32 {FI}, {J}, 1')
    a(f's_add_u32 {FI}, {FI}, {sS}')
    a(f's_lshl_b32 {T0}, {FI}, 7')
    a(f'v_lshlrev_b32 v{t0}, 11, v{vRHO}')
    a(f'v_lshl_add_u32 v{t0}, v{vC8}, 4, v{t0}')
    a(f'v_add_u32 v{t0}, {T0}, v{t0}')
    a(f'v_lshl_add_u32 v{t1}, v{vC8}, 2, v{vR}')
    a(f'v_add_u32 v{hAd}, {E4}, v{t0}')
    a(f'v_add_u32 v{hAd+1}, 16384, v{hAd}')
    a(f'v_lshl_add_u32 v{t2}, v{t1}, 2, {T0}')
    a(f'v_add_u32 v{hAd+2}, {E6+3072}, v{t2}')
    a(f'v_lshrrev_b32 v{hAd+3}, 1, v{t2}')
    a(f'v_lshlrev_b32 v{hAd+4}, 2, v{t1}')
    a(f'v_mov_b32 v{hX}, 0')
    a(f's_mov_b32 {sr(sM)}, 0x00ff00ff')
    a(f's_mov_b32 {sr(sM+1)}, 0x00ff00ff')
    a('s_barrier')
    a('s_barrier')
    a(f'global_load_short_d16_hi v{hX}, v{hAd+3}, {sr(pX,2)}')
    poll([ld1(vG + 8, hAd + 2, -3072), ld1(vG + 9, hAd + 2, 3072), ld4(vG, hAd), ld4(vG + 4, hAd + 1)])
    pkadd(vG, vG, vG + 4); pkadd(vG + 2, vG + 2, vG + 6)
    tred4([vG])
    dpp_red('v_add_f32', [vG], 'row_ror:8')
    rb(vG, vG)
    a(f'v_mul_f32 v{vG}, v{vG+8}, v{vG}')
    rb(vG, vG)
    a(f'v_add_f32 v{vG}, v{hX}, v{vG}')
    rb(hX, vG)
    stamp(11)
    a('s_barrier')
    for k in range(4): a(f'ds_read_b32 v{vG+k}, v{hAd+4} offset:{L_FIN+128*k}')
    a('s_waitcnt lgkmcnt(0)')
    pkadd(vG, vG, vG + 2)
    a(f'v_add_f32 v{vG}, v{vG}, v{vG+1}')
    rb(vG, vG)
    a(f'v_mul_f32 v{vG}, v{vG+9}, v{vG}')
    rb(vG, vG)
    a(f'v_add_f32 v{vG}, v{hX}, v{vG}')
    a(f'v_cvt_pk_bf16_f32 v{vG}, v{vG}, v{vG}')
    a(f's_mov_b64 exec, {sr(sM,2)}')
    a(f'global_store_short v{hAd+3}, v{vG}, {sr(pOUT,2)}')
    stamp(12)
    a(f's_cmp_lg_u32 {FI}, 0')
    a('s_cbranch_scc1 L_A_done')
    a('s_mov_b64 exec, 1')
    a(f'v_mov_b32 v{t0}, 0')
    a(f'global_store_dword v{t0}, v{vE}, {WS} sc1')
    a('s_branch L_A_done')

    V.reset(a_mark)
    vAd = V.get(1)
    a.label('L_A0')
    if exp == 1: a('s_endpgm')
    a(f's_cmp_eq_u32 {W}, 4')
    a('s_cbranch_scc1 L_helperA')
    a(f'v_bfe_u32 v{t0}, v{vL}, 2, 2')
    a(f'v_and_b32 v{t3}, 3, v{vL}')
    a(f'v_lshlrev_b32 v{t0}, 8, v{t0}')
    a(f'v_lshl_add_u32 v{t0}, v{vG4}, 6, v{t0}')
    a(f'v_lshl_add_u32 v{vKo}, v{t3}, 4, v{t0}')
    a(f'v_add_u32 v{vKo+1}, 8192, v{vKo}')
    a(f'v_add_u32 v{aV2}, 8192, v{vL16}')
    a(f's_lshl_b32 {T0}, {J}, 24')
    a(f's_lshl_b32 {T1}, {Y}, 16')
    a(f's_lshl_b32 {T2}, {W}, 14')
    a(f's_add_u32 {T0}, {T0}, {T1}')
    a(f's_add_u32 {T0}, {T0}, {T2}')
    a(f's_add_u32 {T0}, {T0}, {(65536-4096)*256+4096}')
    a('s_waitcnt lgkmcnt(0)')
    stamp(1)
    a(f's_add_u32 {sr(pK)}, {sr(pK)}, {T0}')
    a(f's_addc_u32 {sr(pK+1)}, {sr(pK+1)}, 0')
    epoch_load()
    if adelay >= 1: a('s_waitcnt vmcnt(0)')
    if adelay >= 2:
        a(f'global_load_dword v{vE}, v{vZ}, {WS} offset:0 sc1')
        a(f'global_load_dword v{t3}, v{vZ}, {sr(pOUT,2)} sc1')
        a('s_waitcnt vmcnt(0)')
    for k in range(16):
        a(f'global_load_dwordx4 {vr(vK+4*k,4)}, v{vKo+k//8}, {sr(pK,2)} offset:{1024*(k%8)-4096} nt')
    a(f's_add_u32 {sr(pV)}, {sr(pV)}, {T0}')
    a(f's_addc_u32 {sr(pV+1)}, {sr(pV+1)}, 0')
    for k in range(vsplit):
        a(f'global_load_dwordx4 {vr(vV+4*k,4)}, v{vL16 if k<8 else aV2}, {sr(pV,2)} offset:{1024*(k%8)-4096} nt')

    a(f'v_bfe_u32 v{t3}, v{vL}, 4, 1')
    a(f'v_lshrrev_b32 v{t4}, 5, v{vL}')
    a(f'v_lshl_add_u32 v{vR}, v{t3}, 1, v{t4}')
    common_consts()
    a(f'v_and_b32 v{t0}, 1, v{vL}')
    a(f'v_lshlrev_b32 v{t0}, 4, v{t0}')
    a(f'v_mov_b32 v{t1}, 0xffff')
    a(f'v_lshlrev_b32 v{t0}, v{t0}, v{t1}')
    a(f'v_and_b32 v{t1}, 2, v{vL}')
    a(f'v_cmp_eq_u32 vcc, 0, v{t1}')
    a(f'v_cndmask_b32 v{vN0}, 0, v{t0}, vcc')
    a(f'v_cndmask_b32 v{vN1}, v{t0}, 0, vcc')
    for sq, val in ((sQ1, 0x22222222), (sQ2, 0x44444444), (sQ3, 0x88888888)):
        a(f's_mov_b32 {sr(sq)}, {val:#x}'); a(f's_mov_b32 {sr(sq+1)}, {val:#x}')
    a(f's_mov_b32 {sr(sSC)}, {SCALE:#x}')
    a(f's_mov_b32 {sr(sSC+1)}, {SCALE:#x}')
    a(f's_and_b32 {T0}, {sS}, 1')
    a(f's_lshl_b32 {T0}, {T0}, 1')
    a(f's_lshr_b32 {T1}, {W}, 1')
    a(f's_add_u32 {sr(sM)}, {T0}, {T1}')
    a(f's_and_b32 {sr(sM+1)}, {W}, 1')
    a(f's_lshl_b32 {T0}, {J}, 9')
    a(f's_lshl_b32 {T1}, {sr(sM)}, 7')
    a(f's_add_u32 {T0}, {T0}, {T1}')
    a(f's_lshl_b32 {T1}, {sr(sM+1)}, 2')
    a(f's_add_u32 {T0}, {T0}, {T1}')
    a(f's_lshl_b32 {T0}, {T0}, 10')
    a(f's_lshr_b32 {T1}, {sS}, 1')
    a(f's_lshl_b32 {T1}, {T1}, 7')
    a(f's_add_u32 {T0}, {T0}, {T1}')
    a(f'v_lshlrev_b32 v{t0}, 14, v{vRHO}')
    a(f'v_lshl_add_u32 v{t0}, v{vC8}, 4, v{t0}')
    a(f'v_add_u32 v{vKo}, {T0}, v{t0}')
    a(f'v_add_u32 v{vKo+1}, 8192, v{vKo}')
    aE3, aML, aRw, aE4 = vPF, vPF + 1, vPF + 2, vPF + 3
    aMLw, aMLr, aRr, aE3s, aMLs = vAd, t9, t7, t6, t5
    a(f's_lshl_b32 {T0}, {J}, 15')
    a(f's_lshl_b32 {T1}, {sr(sM)}, 9')
    a(f's_add_u32 {T0}, {T0}, {T1}')
    a(f's_lshl_b32 {T1}, {sr(sM+1)}, 8')
    a(f's_add_u32 {T0}, {T0}, {T1}')
    a(f's_add_u32 {T0}, {T0}, {E3}')
    a(f'v_lshlrev_b32 v{t0}, 11, v{vG4}')
    a(f'v_lshl_add_u32 v{t0}, v{vC16}, 4, v{t0}')
    a(f'v_add_u32 v{aE3}, {T0}, v{t0}')
    a(f's_lshl_b32 {T0}, {J}, 13')
    a(f's_lshl_b32 {T1}, {sr(sM)}, 7')
    a(f's_add_u32 {T0}, {T0}, {T1}')
    a(f's_add_u32 {T0}, {T0}, {E3ML+4096}')
    a(f'v_lshl_add_u32 v{aML}, v{vG4}, 9, {T0}')
    a(f's_lshl_b32 {T1}, {W}, 11')
    a(f'v_add_u32 v{aRw}, {T1}, v{vL16}')
    a(f's_lshl_b32 {T0}, {W}, 3')
    a(f'v_lshl_add_u32 v{aMLw}, v{vL}, 3, {T0}')
    a(f's_lshl_b32 {T1}, {W}, 5')
    a(f'v_and_b32 v{t0}, 3, v{vL}')
    a(f'v_lshl_add_u32 v{aMLr}, v{t0}, 3, {T1}')
    a(f'v_and_b32 v{t0}, 31, v{vL}')
    a(f'v_lshlrev_b32 v{t0}, 3, v{t0}')
    a(f'v_lshl_add_u32 v{t0}, v{t4}, 10, v{t0}')
    a(f's_lshl_b32 {T1}, {W}, 8')
    a(f'v_add_u32 v{aRr}, {T1}, v{t0}')
    a(f's_lshl_b32 {T1}, {J}, 4')
    a(f's_add_u32 {T1}, {T1}, {sS}')
    a(f's_lshl_b32 {T2}, {T1}, 2')
    a(f's_add_u32 {T2}, {T2}, {W}')
    a(f's_lshl_b32 {T2}, {T2}, 7')
    a(f's_add_u32 {T2}, {T2}, {E3ML}')
    a(f'v_mov_b32 v{aMLs}, {T2}')
    a(f's_lshl_b32 {T1}, {T1}, 11')
    a(f's_lshl_b32 {T0}, {W}, 9')
    a(f's_add_u32 {T1}, {T1}, {T0}')
    a(f's_add_u32 {T1}, {T1}, {E3}')
    a(f'v_lshl_add_u32 v{aE3s}, v{vL}, 3, {T1}')
    a(f's_lshl_b32 {T0}, {J}, 1')
    a(f's_and_b32 {T1}, {sS}, 1')
    a(f's_add_u32 {T0}, {T0}, {T1}')
    a(f's_lshl_b32 {T0}, {T0}, 11')
    a(f's_lshr_b32 {T1}, {sS}, 1')
    a(f's_lshl_b32 {T1}, {T1}, 8')
    a(f's_add_u32 {T0}, {T0}, {T1}')
    a(f's_add_u32 {T0}, {T0}, {E4}')
    a(f'v_lshl_add_u32 v{t0}, v{vC16}, 2, v{vR}')
    a(f'v_lshl_add_u32 v{aE4}, v{t0}, 2, {T0}')
    a(f's_waitcnt vmcnt({16+vsplit})')
    epoch_use()
    stamp(2)
    a('s_barrier')
    stamp(3)
    a(f'ds_read_b128 {vr(vQ,4)}, v{vL16} offset:{L_Q}')
    for k in range(vsplit, 16):
        a(f'global_load_dwordx4 {vr(vV+4*k,4)}, v{vL16 if k<8 else aV2}, {sr(pV,2)} offset:{1024*(k%8)-4096} nt')
    a('s_waitcnt vmcnt(16) lgkmcnt(0)')
    stamp(4)
    zS = vD
    def smfma(k): a(f'v_mfma_f32_16x16x32_bf16 {vr(vS+4*(k%4),4)}, {vr(vK+4*k,4)}, {vr(vQ,4)}, 0')
    def sdpp(k):
        d = vS + 4 * (k % 4); o = vG + k
        a(f'v_mov_b32_dpp v{o}, v{d} quad_perm:[0,0,0,0] {DPP}')
        for r in range(1, 4): a(f'v_add_f32_dpp v{o}, v{d+r}, v{o} quad_perm:[{r},{r},{r},{r}] {DPP}')
    LEAD = 3
    for k in range(LEAD): smfma(k)
    for k in range(16):
        if k + LEAD < 16: smfma(k + LEAD)
        sdpp(k)
        if k % 4 == 3:
            z = zS + k // 4; b = vG + k - 3
            a(f'v_cndmask_b32 v{z}, v{b}, v{b+1}, {sr(sQ1,2)}')
            a(f'v_cndmask_b32 v{z}, v{z}, v{b+2}, {sr(sQ2,2)}')
            a(f'v_cndmask_b32 v{z}, v{z}, v{b+3}, {sr(sQ3,2)}')
    zM, zL = vG + 28, vG + 29
    zP = vG + 8
    a(f'v_cvt_pk_bf16_f32 v{t0}, v{zS}, v{zS+1}')
    a(f'v_cvt_pk_bf16_f32 v{t1}, v{zS+2}, v{zS+3}')
    a(f'v_lshlrev_b32 v{vG}, 16, v{t0}')
    a(f'v_and_b32 v{vG+1}, {HI}, v{t0}')
    a(f'v_lshlrev_b32 v{vG+2}, 16, v{t1}')
    a(f'v_and_b32 v{vG+3}, {HI}, v{t1}')
    a(f'v_pk_mul_f32 {vr(vG,2)}, {vr(vG,2)}, {sr(sSC,2)}')
    a(f'v_pk_mul_f32 {vr(vG+2,2)}, {vr(vG+2,2)}, {sr(sSC,2)}')
    a(f'v_cvt_pk_bf16_f32 v{t0}, v{vG}, v{vG+1}')
    a(f'v_cvt_pk_bf16_f32 v{t1}, v{vG+2}, v{vG+3}')
    a(f'v_lshlrev_b32 v{vG}, 16, v{t0}')
    a(f'v_and_b32 v{vG+1}, {HI}, v{t0}')
    a(f'v_lshlrev_b32 v{vG+2}, 16, v{t1}')
    a(f'v_and_b32 v{vG+3}, {HI}, v{t1}')
    a(f'v_max3_f32 v{zM}, v{vG}, v{vG+1}, v{vG+2}')
    a(f'v_max_f32 v{zM}, v{zM}, v{vG+3}')
    dpp_red('v_max_f32', [zM], Q1); dpp_red('v_max_f32', [zM], Q2)
    swap_red('v_max_f32', [zM], 16, [t1]); swap_red('v_max_f32', [zM], 32, [t1])
    for k in range(4): a(f'v_sub_f32 v{vG+k}, v{vG+k}, v{zM}')
    for k in range(4): a(f'v_mul_f32 v{vG+k}, {sr(sLOG2E)}, v{vG+k}')
    for k in range(4): a(f'v_exp_f32 v{vG+k}, v{vG+k}')
    for k in range(4): a(f'v_cvt_pk_bf16_f32 v{zP+k}, v{vG+k}, v{vG+k}')
    pkadd(vG, vG, vG + 2)
    a(f'v_add_f32 v{zL}, v{vG}, v{vG+1}')
    stamp(5)
    for k in range(8):
        a(f'global_load_dwordx4 {vr(vWO+4*k,4)}, v{vKo+k//4}, {sr(pWO,2)} offset:{1024*(k%4)} nt')
    lsteps = [lambda: dpp_red('v_add_f32', [zL], Q1), lambda: dpp_red('v_add_f32', [zL], Q2),
              lambda: a(f'v_mov_b32 v{t1}, v{zL}'),
              lambda: (a(f'v_permlane16_swap_b32 v{zL}, v{t1}'), a(f'v_add_f32 v{zL}, v{zL}, v{t1}')),
              lambda: a(f'v_mov_b32 v{t1}, v{zL}'),
              lambda: (a(f'v_permlane32_swap_b32 v{zL}, v{t1}'), a(f'v_add_f32 v{zL}, v{zL}, v{t1}'))]
    for p in range(8):
        ab = vA + 4 * (p % 4)
        for k in range(2):
            tt = 2 * p + k; src = zP + tt // 4; q = tt & 3
            a(f'v_and_b32_dpp v{ab+2*k}, v{src}, v{vN0} quad_perm:[{q},{q},{q},{q}] {DPP}')
            a(f'v_and_b32_dpp v{ab+2*k+1}, v{src}, v{vN1} quad_perm:[{q},{q},{q},{q}] {DPP}')
        a(f's_waitcnt vmcnt({8+14-2*p})')
        if p == 7: stamp(14)
        a(f'v_swap_b32 v{vV+8*p+2}, v{vV+8*p+4}')
        a(f'v_swap_b32 v{vV+8*p+3}, v{vV+8*p+5}')
        if p < 6: lsteps[p]()
        a(f'v_mfma_f32_16x16x32_bf16 {vr(vO,4)}, {vr(ab,4)}, {vr(vV+8*p,4)}, ' + ('0' if p == 0 else vr(vO, 4)))
        a(f'v_mfma_f32_16x16x32_bf16 {vr(vO+4,4)}, {vr(ab,4)}, {vr(vV+8*p+4,4)}, ' + ('0' if p == 0 else vr(vO + 4, 4)))
    stamp(6)
    a('s_mov_b64 exec, 0x1111')
    a(f'ds_write_b64 v{aMLw}, {vr(zM,2)} offset:{L_ML}')
    a('s_mov_b64 exec, -1')
    a(f'ds_write_b128 v{aRw}, {vr(vO,4)} offset:{L_BIG}')
    a(f'ds_write_b128 v{aRw}, {vr(vO+4,4)} offset:{L_BIG+1024}')
    a('s_waitcnt lgkmcnt(0)')
    a('s_barrier')
    a(f'ds_read_b64 {vr(zM,2)}, v{aMLr} offset:{L_ML}')
    for k in range(4): a(f'ds_read_b64 {vr(vG+2*k,2)}, v{aRr} offset:{L_BIG+2048*k}')
    a('s_waitcnt lgkmcnt(4)')
    zA = vG + 12
    a(f'v_max_f32_dpp v{zA}, v{zM}, v{zM} {Q1} {DPP}')
    dpp_red('v_max_f32', [zA], Q2)
    a(f'v_sub_f32 v{zM}, v{zM}, v{zA}')
    a(f'v_mul_f32 v{zM}, {sr(sLOG2E)}, v{zM}')
    a(f'v_exp_f32 v{zM}, v{zM}')
    a(f'v_mul_f32 v{zA+1}, v{zM}, v{zL}')
    a('s_waitcnt lgkmcnt(0)')
    for k in range(4):
        op = 'v_mul_f32_dpp' if k == 0 else 'v_fmac_f32_dpp'
        a(f'{op} v{vG+8}, v{zM}, v{vG+2*k} quad_perm:[{k},{k},{k},{k}] {DPP}')
        a(f'{op} v{vG+9}, v{zM}, v{vG+2*k+1} quad_perm:[{k},{k},{k},{k}] {DPP}')
        if k == 0: dpp_red('v_add_f32', [zA + 1], Q1)
        if k == 2: dpp_red('v_add_f32', [zA + 1], Q2)
    tag(vG + 8); tag(vG + 9)
    a(f'global_store_dwordx2 v{aE3s}, {vr(vG+8,2)}, {WS} sc1')
    tag(zA); tag(zA + 1)
    a('s_mov_b64 exec, 1')
    a(f'global_store_dwordx2 v{aMLs}, {vr(zA,2)}, {WS} sc1')
    a('s_mov_b64 exec, -1')
    stamp(7)
    a(f'v_add_u32 v{t0}, 8192, v{aE3}')
    a(f'v_add_u32 v{t1}, 16384, v{aE3}')
    a(f'v_add_u32 v{t2}, 24576, v{aE3}')
    if diag:
        a('s_waitcnt vmcnt(0)')
        stamp(8)
    ml = vG + 16
    poll([ld2(ml + 2 * k, aML, 2048 * k - 4096) for k in range(4)] +
         [ld4(vG + 4 * k, [aE3, t0, t1, t2][k]) for k in range(4)])
    stamp(9)
    a(f'v_max3_f32 v{zM}, v{ml}, v{ml+2}, v{ml+4}')
    a(f'v_max_f32 v{zM}, v{zM}, v{ml+6}')
    swap_red('v_max_f32', [zM], 16, [t1]); swap_red('v_max_f32', [zM], 32, [t1])
    for k in range(4): a(f'v_sub_f32 v{ml+2*k}, v{ml+2*k}, v{zM}')
    for k in range(4): a(f'v_mul_f32 v{ml+2*k}, {sr(sLOG2E)}, v{ml+2*k}')
    for k in range(4): a(f'v_exp_f32 v{ml+2*k}, v{ml+2*k}')
    a(f'v_mul_f32 v{zL}, v{ml}, v{ml+1}')
    sel = 'op_sel:[0,0,0] op_sel_hi:[1,0,1]'
    a(f'v_pk_mul_f32 {vr(vG,2)}, {vr(vG,2)}, {vr(ml,2)} op_sel:[0,0] op_sel_hi:[1,0]')
    a(f'v_pk_mul_f32 {vr(vG+2,2)}, {vr(vG+2,2)}, {vr(ml,2)} op_sel:[0,0] op_sel_hi:[1,0]')
    for k in range(1, 4):
        a(f'v_fmac_f32 v{zL}, v{ml+2*k}, v{ml+2*k+1}')
        a(f'v_pk_fma_f32 {vr(vG,2)}, {vr(vG+4*k,2)}, {vr(ml+2*k,2)}, {vr(vG,2)} {sel}')
        a(f'v_pk_fma_f32 {vr(vG+2,2)}, {vr(vG+4*k+2,2)}, {vr(ml+2*k,2)}, {vr(vG+2,2)} {sel}')
    a(f'v_mov_b32 v{t1}, v{zL}')
    a(f'v_permlane32_swap_b32 v{vG}, v{vG+1}')
    a(f'v_permlane32_swap_b32 v{vG+2}, v{vG+3}')
    a(f'v_permlane16_swap_b32 v{zL}, v{t1}')
    a(f'v_add_f32 v{vG}, v{vG}, v{vG+1}'); a(f'v_add_f32 v{vG+2}, v{vG+2}, v{vG+3}')
    a(f'v_add_f32 v{zL}, v{zL}, v{t1}')
    a(f'v_mov_b32 v{t1}, v{zL}')
    a(f'v_permlane16_swap_b32 v{vG}, v{vG+2}')
    a(f'v_permlane32_swap_b32 v{zL}, v{t1}')
    a(f'v_add_f32 v{vG}, v{vG}, v{vG+2}')
    a(f'v_add_f32 v{zL}, v{zL}, v{t1}')
    a(f'v_rcp_f32 v{zL}, v{zL}')
    a(f'v_mul_f32 v{vG}, v{vG}, v{zL}')
    a(f'v_cvt_pk_bf16_f32 v{vG}, v{vG}, v{vG}')
    a(f'ds_write_b32 v{vXW}, v{vG}')
    a('s_waitcnt lgkmcnt(0)')
    a(f'ds_read_b128 {vr(vG+8,4)}, v{vXR}')
    a(f'ds_read_b128 {vr(vG+12,4)}, v{vXR} offset:16')
    a('s_waitcnt lgkmcnt(0)')
    diag_gemv([vWO + 4 * k for k in range(8)], [vG + 8 + k for k in range(8)])
    tile_reduce(L_TR1, aE4)
    stamp(10)
    a(f's_cmp_ge_u32 {sS}, 2')
    a('s_cbranch_scc1 L_A_done')
    a(f's_lshl_b32 {FI}, {J}, 1')
    a(f's_add_u32 {FI}, {FI}, {sS}')
    a(f's_lshl_b32 {T0}, {FI}, 7')
    a(f's_lshl_b32 {T1}, {W}, 16')
    a(f's_add_u32 {T0}, {T0}, {T1}')
    a(f's_add_u32 {T0}, {T0}, {E5}')
    a(f'v_lshlrev_b32 v{t0}, 11, v{vRHO}')
    a(f'v_lshl_add_u32 v{t0}, v{vC8}, 4, v{t0}')
    a(f'v_add_u32 v{t0}, {T0}, v{t0}')
    for k in range(1, 4): a(f'v_add_u32 v{t[k]}, {16384*k}, v{t0}')
    a(f'v_lshl_add_u32 v{t4}, v{vC8}, 2, v{vR}')
    a(f's_lshl_b32 {T1}, {W}, 7')
    a(f'v_lshl_add_u32 v{t4}, v{t4}, 2, {T1}')
    def post5(k):
        if k == 1: pkadd(vG, vG, vG + 4); pkadd(vG + 2, vG + 2, vG + 6)
        if k == 2: pkadd(vG, vG, vG + 8); pkadd(vG + 2, vG + 2, vG + 10)
        if k == 3: pkadd(vG, vG, vG + 12); pkadd(vG + 2, vG + 2, vG + 14)
    poll([ld4(vG + 4 * k, t[k]) for k in range(4)], post5)
    stamp(11)
    tred4([vG])
    dpp_red('v_add_f32', [vG], 'row_ror:8')
    a(f'ds_write_b32 v{t4}, v{vG} offset:{L_FIN}')
    a('s_waitcnt lgkmcnt(0)')
    a('s_barrier')
    stamp(12)
    a.label('L_A_done')
    finish()
    a.label('L_end')
    a('s_endpgm')

    nv = (V.hi + 7) // 8 * 8
    head = [f'; @launch grid=(256,1,1) block=(320,1,1) lds={LDS_BYTES}',
            '.amdgcn_target "amdgcn-amd-amdhsa--gfx950"', '.text', f'.globl {KNAME}', '.p2align 8', f'.type {KNAME},@function']
    tail = [f'.fill ({code_kb}*1024 - (. - {KNAME}))/4, 4, 0xbf810000',
            '.section .rodata,"a"', '.p2align 6', f'.amdhsa_kernel {KNAME}',
            f'  .amdhsa_next_free_vgpr {nv}', '  .amdhsa_next_free_sgpr 100', f'  .amdhsa_accum_offset {nv}',
            '  .amdhsa_group_segment_fixed_size 0', '  .amdhsa_kernarg_size 112', '  .amdhsa_user_sgpr_count 2',
            '  .amdhsa_user_sgpr_kernarg_segment_ptr 1', '  .amdhsa_system_sgpr_workgroup_id_x 1',
            '  .amdhsa_float_denorm_mode_32 3', '.end_amdhsa_kernel']
    return '\n'.join(head) + '\n' + a.text() + '\n'.join(tail) + '\n', nv, a.nnop

if __name__ == '__main__':
    out = sys.argv[1]
    kw = {}
    for x in sys.argv[2:]:
        k, v = x.split('='); kw[k] = int(v)
    kw.setdefault('code_kb', 15 if kw.get('diag') else 13)
    s, nv, nn = gen(**kw)
    open(out, 'w').write(s)
    print('vgprs', nv, 'nops', nn)
```

```python
import sys
sys.path.insert(0, 'gen')
from asmlib import Asm, RegAlloc, vr, sr

KNAME = 'adaLN_cond__sliding_block_cached__glu_gated_bilinear__decode_kernel'
LOG2E = 0x3fb8aa3b
SCALE = 0x3db504f3
EPS = 0x3727c5ac
DPP = 'row_mask:0xf bank_mask:0xf'
Q1, Q2, HM, RM = 'quad_perm:[1,0,3,2]', 'quad_perm:[2,3,0,1]', 'row_half_mirror', 'row_mirror'

E1, E2, E3, E3ML, E8, E7, E4, E6, E5 = 0x1000, 0x10000, 0x20000, 0x64000, 0x78000, 0xB0000, 0xB8000, 0xC2000, 0xC4000
RS, MS = 2176, 640
STAMPS = 0x10000000
LOC = 0xF0000
SPIN = 20000

L_TR1, L_TR2 = 0, 2048
L_XD = 4096
L_Q = 5120
L_ML = 6144
L_FIN = 6272
L_ST = 6784
L_Y = 6912
L_BIG = 8448
LDS_BYTES = L_BIG + 49152

def gen(diag=False, code_kb=12, adelay=0, h1wait=4, pfpol=1, pf=1, exp=0, vsplit=16, local3=0, sep=0, dbg=0, dbl=0, late=0, tdel=0, pfdst=0, dnlast=0, altmask=31, touch=0, nrpol=1, mbe=1, tdel2=0, vst=0, fine=0, athr=0, aw=0, bthr=0, wopf=0, wopol=0, kvmap=0, vph=8, jph=0, aexp=0, wopos=1):
    a = Asm()
    PFP = {0: '', 1: ' nt', 2: ' sc0 nt', 3: ' sc1 nt', 4: ' sc0 sc1 nt'}[pfpol]
    NRP = {0: '', 1: ' nt'}[nrpol]
    S = RegAlloc('s', 32, 68)
    V = RegAlloc('v', 1, 256)
    pX, pK, pV, pWQ, pWO, pWG, pWU = 4, 6, 8, 10, 12, 16, 18
    pWD, pC, pWM, pOUT, pWS = 20, 22, 24, 26, 30
    WS = sr(pWS, 2)
    sJ, sY, sW, sT0, sT1, sT2, sT3, sCNT = [S.get() for _ in range(8)]
    sLOG2E, sHI, sFF, sFI = [S.get() for _ in range(4)]
    sUSE = S.get(2); sQ1 = S.get(2); sQ2 = S.get(2); sQ3 = S.get(2); sPC = S.get(2); sM = S.get(2)
    sSC = S.get(2); sAB = S.get(2); sE = S.get()
    T0, T1, T2, T3 = sr(sT0), sr(sT1), sr(sT2), sr(sT3)
    J, Y, W, HI = sr(sJ), sr(sY), sr(sW), sr(sHI)
    sSTAMP = 68
    NST = 15
    def stamp(n):
        if diag: a(f's_memrealtime s[{sSTAMP+2*n}:{sSTAMP+2*n+1}]')
    vL = V.get(); vRHO = V.get(); vC8 = V.get(); vL16 = V.get(); vT = V.get(); vE = V.get()
    vR = V.get(); vG4 = V.get(); vC16 = V.get(); vZ = V.get()
    vM = V.get(4)
    vTRW = V.get(); vXW = V.get(); vXR = V.get()
    vPF = V.get(4); vDUM = V.get()
    t = [V.get() for _ in range(10)]
    t0, t1, t2, t3, t4, t5, t6, t7, t8, t9 = t
    vG = V.get(32)
    vA = V.get(16)
    vD = V.get(4)
    common_mark = V.mark()

    def rb(dst, src):
        a(f'v_cvt_pk_bf16_f32 v{dst}, v{src}, v{src}')
        a(f'v_and_b32 v{dst}, {HI}, v{dst}')
    def rb2(d0, s0, s1, tmp):
        a(f'v_cvt_pk_bf16_f32 v{tmp}, v{s0}, v{s1}')
        a(f'v_lshlrev_b32 v{d0}, 16, v{tmp}')
        a(f'v_and_b32 v{d0+1}, {HI}, v{tmp}')
    def swap_red(op, regs, kind, tmps):
        for r, x in zip(regs, tmps): a(f'v_mov_b32 v{x}, v{r}')
        for r, x in zip(regs, tmps): a(f'v_permlane{kind}_swap_b32 v{r}, v{x}')
        for r, x in zip(regs, tmps): a(f'{op} v{r}, v{r}, v{x}')
    def dpp_red(op, regs, ctl):
        for r in regs: a(f'{op}_dpp v{r}, v{r}, v{r} {ctl} {DPP}')
    def allred(op, regs, tmps):
        for ctl in (Q1, Q2, HM, RM): dpp_red(op, regs, ctl)
        swap_red(op, regs, 16, tmps); swap_red(op, regs, 32, tmps)
    def red63(regs):
        for ctl in (Q1, Q2, HM, RM): dpp_red('v_add_f32', regs, ctl)
        for r in regs: a(f'v_add_f32_dpp v{r}, v{r}, v{r} row_bcast:15 row_mask:0xa bank_mask:0xf')
        for r in regs: a(f'v_add_f32_dpp v{r}, v{r}, v{r} row_bcast:31 row_mask:0xc bank_mask:0xf')
    def tred4(groups):
        for b in groups:
            a(f'v_permlane32_swap_b32 v{b}, v{b+1}'); a(f'v_permlane32_swap_b32 v{b+2}, v{b+3}')
        for b in groups:
            a(f'v_add_f32 v{b}, v{b}, v{b+1}'); a(f'v_add_f32 v{b+2}, v{b+2}, v{b+3}')
        for b in groups: a(f'v_permlane16_swap_b32 v{b}, v{b+2}')
        for b in groups: a(f'v_add_f32 v{b}, v{b}, v{b+2}')
    def pkadd(d, x, y): a(f'v_pk_add_f32 {vr(d,2)}, {vr(x,2)}, {vr(y,2)}')
    pollid = [0]
    deferred = []
    def poll(loads, post=None, alt=False, cnt_slot=None, first_slot=None, late_st=None):
        n = pollid[0]; pollid[0] += 1
        N = len(loads)
        a(f's_mov_b32 {sr(sCNT)}, {SPIN}')
        for txt, regs in loads: a(txt)
        for k, (txt, regs) in enumerate(loads):
            a.label(f'L_chk{n}_{k}')
            a(f's_waitcnt vmcnt({N-1-k})')
            if diag and first_slot is not None and k == 0:
                a(f's_cmp_lg_u32 {sr(sCNT)}, {SPIN}')
                a(f's_cbranch_scc1 L_nf{n}')
                stamp(first_slot)
                a.label(f'L_nf{n}')
            for r in regs: a(f'v_xor_b32 v{r}, v{vT}, v{r}')
            rs = list(regs)
            if len(rs) == 4:
                a(f'v_or3_b32 v{t8}, v{rs[0]}, v{rs[1]}, v{rs[2]}')
                a(f'v_and_or_b32 v{t8}, v{t8}, {sr(sFF)}, 0' if False else f'v_or_b32 v{t8}, v{t8}, v{rs[3]}')
            elif len(rs) == 2:
                a(f'v_or_b32 v{t8}, v{rs[0]}, v{rs[1]}')
            src = t8 if len(rs) > 1 else rs[0]
            a(f'v_cmp_ne_u32_sdwa vcc, v{src}, v{vZ} src0_sel:BYTE_0 src1_sel:DWORD')
            a(f's_cbranch_vccnz L_rty{n}_{k}')
            a.label(f'L_ok{n}_{k}')
            if post: post(k)
        if diag and cnt_slot is not None:
            a('s_waitcnt lgkmcnt(0)')
            a(f's_sub_u32 {T0}, {SPIN}, {sr(sCNT)}')
            a(f's_mul_i32 {T0}, {T0}, 100')
            a(f's_add_u32 s{sSTAMP+2*cnt_slot}, s{sSTAMP}, {T0}')
        def handlers():
            for k in range(N):
                a.label(f'L_rty{n}_{k}')
                a(f's_cmp_eq_u32 {sr(sCNT)}, 0')
                a(f's_cbranch_scc1 L_ok{n}_{k}')
                a(f's_sub_u32 {sr(sCNT)}, {sr(sCNT)}, 1')
                if alt:
                    a(f's_and_b32 {T0}, {sr(sCNT)}, {altmask}')
                    if late_st:
                        a(f's_cbranch_scc1 L_nst{n}_{k}')
                        late_st()
                        a.label(f'L_nst{n}_{k}')
                        a(f's_and_b32 {T0}, {sr(sCNT)}, {altmask}')
                    a(f's_cselect_b32 {T0}, {LOC}, 0')
                    a(f's_add_u32 {sr(sAB)}, {sr(pWS)}, {T0}')
                    a(f's_addc_u32 {sr(sAB+1)}, {sr(pWS+1)}, 0')
                for txt, regs in loads[k:]: a(txt)
                a(f's_branch L_chk{n}_{k}')
        deferred.append(handlers)
    def flush_handlers():
        while deferred: deferred.pop(0)()
    def ld4(r, addr, off=0): return (f'global_load_dwordx4 {vr(r,4)}, v{addr}, {WS} offset:{off} sc1', list(range(r, r + 4)))
    def ld2(r, addr, off=0): return (f'global_load_dwordx2 {vr(r,2)}, v{addr}, {WS} offset:{off} sc1', [r, r + 1])
    def ld1(r, addr, off=0): return (f'global_load_dword v{r}, v{addr}, {WS} offset:{off} sc1', [r])
    def tag(r): a(f'v_bfi_b32 v{r}, {sr(sFF)}, v{vT}, v{r}')
    def diag_gemv(frags, xregs, waits=None):
        n = len(frags)
        def build(k):
            ab = vA + 4 * (k % 4)
            for r in range(4): a(f'v_and_b32 v{ab+r}, v{xregs[k]}, v{vM+r}')
        build(0)
        for k in range(n):
            if k + 1 < n: build(k + 1)
            if waits: a(waits[k])
            a(f'v_mfma_f32_16x16x32_bf16 {vr(vD,4)}, {vr(vA+4*(k%4),4)}, {vr(frags[k],4)}, ' + ('0' if k == 0 else vr(vD, 4)))
    trid = [0]
    def tile_reduce(trbase, vdst_off):
        n = trid[0]; trid[0] += 1
        a(f's_mov_b64 exec, {sr(sUSE,2)}')
        a(f'ds_write_b128 v{vTRW}, {vr(vD,4)} offset:{trbase}')
        a('s_mov_b64 exec, -1')
        a(f's_cmp_lg_u32 {W}, 0')
        a('s_waitcnt lgkmcnt(0)')
        a('s_barrier')
        a(f's_cbranch_scc1 L_trskip{n}')
        for k in range(2): a(f'ds_read_b128 {vr(vG+4*k,4)}, v{vL16} offset:{trbase+1024*k}')
        a('s_waitcnt lgkmcnt(0)')
        pkadd(vG, vG, vG + 4); pkadd(vG + 2, vG + 2, vG + 6)
        tred4([vG])
        tag(vG)
        a(f'global_store_dword v{vdst_off}, v{vG}, {WS} sc1')
        a.label(f'L_trskip{n}')
    def silu_dup(dst, src, tmp):
        a(f'v_mul_f32 v{tmp}, {sr(sLOG2E)}, v{src}')
        a(f'v_exp_f32 v{tmp}, -v{tmp}')
        a(f'v_add_f32 v{tmp}, 1.0, v{tmp}')
        a(f'v_rcp_f32 v{tmp}, v{tmp}')
        a(f'v_mul_f32 v{tmp}, v{src}, v{tmp}')
        a(f'v_cvt_pk_bf16_f32 v{dst}, v{tmp}, v{tmp}')
    fin = [0]
    def finish():
        if diag and dbg:
            n = fin[0]; fin[0] += 1
            a('s_waitcnt lgkmcnt(0)')
            a(f's_and_b32 {T0}, s2, 0x7f')
            a(f's_or_b32 {T0}, {T0}, {W}')
            a(f's_cmp_lg_u32 {T0}, 0')
            a(f's_cbranch_scc1 L_end')
            a(f's_lshr_b32 {T0}, s2, 7')
            a(f's_xor_b32 {T0}, {T0}, 1')
            a(f's_lshl_b32 {T0}, {T0}, 5')
            a(f'v_mov_b32 v{t0}, {T0}')
            a('s_mov_b64 exec, 1')
            sel = {1: [0, 2, 3, 5, 6, 7, 9, 11], 2: [0, 1, 2, 3, 4, 5, 6, 7]}[dbg]
            selA = {1: [0, 2, 3, 6, 7, 9, 10, 12], 2: [0, 1, 2, 3, 4, 5, 6, 7]}[dbg]
            a(f's_cmp_ge_u32 s2, 128')
            for k in range(8):
                a(f's_cselect_b32 {T1}, s{sSTAMP+2*sel[k]}, s{sSTAMP+2*selA[k]}')
                a(f'v_mov_b32 v{t1}, {T1}')
                a(f'global_store_dword v{t0}, v{t1}, s[28:29] offset:{4*k}')
        elif diag:
            a('s_waitcnt lgkmcnt(0)')
            a(f's_lshl_b32 {T0}, s2, 3')
            a(f's_add_u32 {T0}, {T0}, {W}')
            a(f's_lshl_b32 {T0}, {T0}, 7')
            a(f's_add_u32 {T0}, {T0}, {STAMPS:#x}')
            a(f'v_mov_b32 v{t0}, {T0}')
            a('s_mov_b64 exec, 1')
            for n in range(NST):
                a(f'v_mov_b32 v{t1}, s{sSTAMP+2*n}')
                a(f'global_store_dword v{t0}, v{t1}, {WS} offset:{4*n}')
        a('s_endpgm')
        flush_handlers()
    def helper_stamp(slot):
        if diag:
            a(f's_memrealtime s[{sSTAMP}:{sSTAMP+1}]')
            a(f's_lshl_b32 {T0}, s2, 7')
            a(f's_add_u32 {T0}, {T0}, {STAMPS+4*slot:#x}')
            a(f'v_mov_b32 v{t0}, {T0}')
            a('s_waitcnt lgkmcnt(0)')
            a(f'v_mov_b32 v{t1}, s{sSTAMP}')
            a(f'global_store_dword v{t0}, v{t1}, {WS}')
    def epoch_load():
        if sep == 0: a(f'global_load_dword v{vE}, v{vZ}, {WS} sc1')
        elif sep == 1: a(f's_load_dword {sr(sE)}, {WS}, 0'); a(f'global_load_dword v{vE}, v{vZ}, {sr(pX,2)}')
        elif sep == 2: a(f'global_load_dword v{vE}, v{vZ}, {WS}')
    def epoch_use():
        if sep == 1:
            a('s_waitcnt lgkmcnt(0)')
            a(f'v_mov_b32 v{vE}, {sr(sE)}')
        a(f'v_add_u32 v{vE}, 1, v{vE}')
        a(f'v_and_b32 v{vT}, 0xff, v{vE}')
    def common_consts():
        a(f's_mov_b32 {sr(sLOG2E)}, {LOG2E:#x}')
        a(f's_mov_b32 {HI}, 0xffff0000')
        a(f's_movk_i32 {sr(sFF)}, 0xff')
        a(f's_mov_b32 {sr(sUSE)}, 0x00ff00ff')
        a(f's_mov_b32 {sr(sUSE+1)}, 0xff00ff00')
        a(f'v_and_b32 v{t5}, 1, v{vL}')
        a(f'v_lshlrev_b32 v{t5}, 4, v{t5}')
        a(f'v_mov_b32 v{t6}, 0xffff')
        a(f'v_lshlrev_b32 v{t5}, v{t5}, v{t6}')
        a(f'v_lshrrev_b32 v{t6}, 1, v{vC8}')
        for r in range(4):
            a(f'v_cmp_eq_u32 vcc, {r}, v{t6}')
            a(f'v_cndmask_b32 v{vM+r}, 0, v{t5}, vcc')
        a(f'v_lshrrev_b32 v{t5}, 5, v{vL}')
        a(f'v_bfe_u32 v{t6}, v{vL}, 4, 1')
        a(f'v_lshlrev_b32 v{t5}, 8, v{t5}')
        a(f'v_lshl_add_u32 v{t5}, v{t6}, 4, v{t5}')
        a(f'v_lshl_add_u32 v{t5}, v{vC8}, 5, v{t5}')
        a(f's_lshl_b32 {T3}, {W}, 9')
        a(f'v_add_u32 v{vTRW}, {T3}, v{t5}')
        a(f's_lshl_b32 {T3}, {W}, 8')
        a(f's_add_u32 {T3}, {T3}, {L_XD}')
        a(f'v_lshl_add_u32 v{t5}, v{vC16}, 2, v{vR}')
        a(f'v_lshl_add_u32 v{vXW}, v{t5}, 2, {T3}')
        a(f'v_lshl_add_u32 v{vXR}, v{vRHO}, 5, {T3}')

    a.raw(f'{KNAME}:')
    a('s_load_dwordx16 s[4:19], s[0:1], 0')
    a('s_load_dwordx8 s[20:27], s[0:1], 64')
    a('s_load_dwordx4 s[28:31], s[0:1], 96')
    a(f's_getpc_b64 {sr(sPC,2)}')
    a.label('L_pc')
    a('s_cmp_ge_u32 s2, 256')
    a('s_cbranch_scc1 L_end')
    a(f's_lshr_b32 {Y}, s2, 3')
    a(f'v_lshrrev_b32 v{t0}, 6, v0')
    a(f's_mul_i32 {T0}, {Y}, 5')
    a(f'v_add_u32 v{t1}, {T0}, v{t0}')
    a(f'v_min_u32 v{t1}, {code_kb*8-2}, v{t1}')
    a(f'v_lshlrev_b32 v{t1}, 7, v{t1}')
    a(f'global_load_dword v{vDUM}, v{t1}, {sr(sPC,2)}')
    if diag:
        for n in range(NST): a(f's_mov_b64 s[{sSTAMP+2*n}:{sSTAMP+2*n+1}], 0')
    stamp(0)
    if dbl: a('s_memrealtime s[96:97]')
    a(f'v_and_b32 v{vL}, 63, v0')
    a(f'v_readfirstlane_b32 {W}, v{t0}')
    a(f's_and_b32 {J}, s2, 7')
    a(f'v_lshlrev_b32 v{vL16}, 4, v{vL}')
    a(f'v_lshrrev_b32 v{vRHO}, 3, v{vL}')
    a(f'v_and_b32 v{vC8}, 7, v{vL}')
    a(f'v_lshrrev_b32 v{vG4}, 4, v{vL}')
    a(f'v_and_b32 v{vC16}, 15, v{vL}')
    a(f'v_mov_b32 v{vZ}, 0')
    a(f's_cmp_lt_u32 {Y}, 16')
    a('s_cbranch_scc1 L_A0')
    a(f's_cmp_eq_u32 {W}, 4')
    a('s_cbranch_scc1 L_end')

    vK = V.get(64); vV = V.get(64); vS = vA
    vWO = V.get(32)
    a_regs = dict(vKo=V.get(2), vN0=V.get(), vN1=V.get())
    vKo, vN0, vN1 = a_regs['vKo'], a_regs['vN0'], a_regs['vN1']
    aV2 = V.get()
    a_mark = V.mark()
    vQ = vG + 24; vO = vG + 16
    V.reset(common_mark)
    vSd = V.get(4); vB2 = V.get(); vMB = V.get(); vPFA = V.get(); vFD = V.get(16)
    vE4 = V.get(2); vX1 = V.get(); vE6 = V.get(); aDN = V.get(); aTG = V.get(); aTD = V.get()
    vStG = V.get(); vStD = V.get(); aYW = V.get(); aYR = V.get(); vE5 = V.get(); vSTR = V.get(); vSTW = V.get()
    aE8s = V.get(); aE8l = V.get(); vC0 = V.get(); vC1 = V.get(); vC2 = V.get()
    keep_mark = V.mark()
    vCs = V.get(); vMT = V.get(8); vX = V.get(4); vXd = V.get(); vWQ = V.get(32)
    vB0 = V.get(); vB1 = V.get(); vH = V.get(8)
    I = Y
    a(f's_sub_u32 {I}, {Y}, 16')
    a(f's_lshl_b32 {T0}, {J}, 6')
    a(f's_lshl_b32 {T1}, {W}, 4')
    a(f's_add_u32 {T0}, {T0}, {T1}')
    a(f'v_lshl_add_u32 v{t0}, v{vRHO}, 1, {T0}')
    a(f'v_lshlrev_b32 v{t1}, 1, v{t0}')
    a(f'v_mul_u32_u24 v{t0}, 6144, v{t0}')
    a(f's_lshl_b32 {T2}, {I}, 7')
    a(f'v_lshl_add_u32 v{t0}, v{vC8}, 4, v{t0}')
    a(f'v_add_u32 v{t0}, {T2}, v{t0}')
    a(f'v_add_u32 v{t5}, 6144, v{t0}')
    a('s_waitcnt lgkmcnt(0)')
    stamp(1)
    a(f'global_load_dword v{vCs}, v{t1}, {sr(pC,2)}')
    a(f'global_load_dwordx4 {vr(vMT,4)}, v{t0}, {sr(pWM,2)} nt')
    a(f'global_load_dwordx4 {vr(vMT+4,4)}, v{t5}, {sr(pWM,2)} nt')
    epoch_load()
    a(f'v_bfe_u32 v{t3}, v{vL}, 4, 1')
    a(f'v_lshrrev_b32 v{t4}, 5, v{vL}')
    a(f'v_lshl_add_u32 v{vR}, v{t3}, 1, v{t4}')
    a(f's_and_b32 {T0}, {I}, 1')
    a(f's_lshl_b32 {T0}, {T0}, 8')
    a(f's_lshl_b32 {T1}, {W}, 6')
    a(f's_add_u32 {T0}, {T0}, {T1}')
    a(f'v_lshl_add_u32 v{t3}, v{vC16}, 2, v{vR}')
    a(f'v_add_lshl_u32 v{t3}, v{t3}, {T0}, 1')
    a(f'v_lshl_add_u32 v{t4}, v{vRHO}, 3, {T0}')
    a(f'v_lshlrev_b32 v{t4}, 13, v{t4}')
    a(f's_lshl_b32 {T1}, {J}, 10')
    a(f's_lshr_b32 {T2}, {I}, 1')
    a(f's_lshl_b32 {T2}, {T2}, 7')
    a(f's_add_u32 {T1}, {T1}, {T2}')
    a(f'v_lshl_add_u32 v{t4}, v{vC8}, 4, v{t4}')
    a(f'v_add_u32 v{t4}, {T1}, v{t4}')
    a(f'v_mov_b32 v{vXd}, 0')
    a(f's_and_b32 {T0}, {I}, 3')
    a(f's_lshl_b32 {T0}, {T0}, 7')
    a(f's_lshl_b32 {T1}, {W}, 5')
    a(f's_add_u32 {T0}, {T0}, {T1}')
    a(f'v_lshl_add_u32 v{vMB}, v{vRHO}, 2, {T0}')
    a(f'v_lshlrev_b32 v{t6}, 1, v{vMB}')
    a(f'v_lshl_add_u32 v{t7}, v{vC8}, 2, v{vR}')
    a(f'v_add_lshl_u32 v{t7}, v{t7}, {T0}, 1')
    a(f'v_mov_b32 v{vX1}, 0')
    a('s_barrier')
    a(f'global_load_dwordx4 {vr(vX,4)}, v{vL16}, {sr(pX,2)}')
    a(f'global_load_short_d16_hi v{vXd}, v{t3}, {sr(pX,2)}')
    a(f'global_load_dwordx2 {vr(vSd+2,2)}, v{t6}, {sr(pC,2)}')
    a(f'global_load_short_d16_hi v{vX1}, v{t7}, {sr(pX,2)}')
    for k in range(8):
        a(f'global_load_dwordx4 {vr(vWQ+4*k,4)}, v{t4}, {sr(pWQ,2)} nt')
        if k < 7: a(f'v_add_u32 v{t4}, 8192, v{t4}')
    a(f's_lshl_b32 {T0}, {J}, 4')
    a(f's_add_u32 {T0}, {T0}, {I}')
    a(f's_lshr_b32 {T1}, {T0}, 2')
    a(f's_lshl_b32 {T1}, {T1}, 7')
    a(f's_add_u32 {T1}, {T1}, 2048')
    a(f'v_mul_u32_u24 v{vMB}, 6144, v{vMB}')
    a(f'v_lshl_add_u32 v{vMB}, v{vC8}, 4, v{vMB}')
    a(f'v_add_u32 v{vMB}, {T1}, v{vMB}')
    common_consts()
    a(f'v_lshl_add_u32 v{t6}, v{vC16}, 2, v{vR}')
    a(f's_lshl_b32 {T0}, {I}, 3')
    a(f's_add_u32 {T0}, {T0}, {J}')
    a(f's_lshl_b32 {T0}, {T0}, 8')
    a(f's_add_u32 {T0}, {T0}, {E1}')
    a(f'v_lshl_add_u32 v{vB0}, v{t6}, 2, {T0}')
    a('s_waitcnt vmcnt(15)')
    a(f'v_lshlrev_b32 v{t3}, 16, v{vCs}')
    a(f'v_and_b32 v{t4}, {HI}, v{vCs}')
    silu_dup(t0, t3, t5); silu_dup(t1, t4, t6)
    diag_gemv([vMT, vMT + 4], [t0, t1], ['s_waitcnt vmcnt(14)', 's_waitcnt vmcnt(12)'])
    stamp(2)
    epoch_use()
    tile_reduce(L_TR1, vB0)
    stamp(3)
    def modb_loads():
        for k in range(4):
            a(f'global_load_dwordx4 {vr(vFD+4*k,4)}, v{vMB}, {sr(pWM,2)} nt')
            if k < 3: a(f'v_add_u32 v{vMB}, 6144, v{vMB}')
    if mbe:
        a('s_barrier')
        modb_loads()
    a(f's_waitcnt vmcnt({12 if mbe else 8})')
    xs = vG
    for k in range(4):
        a(f'v_lshlrev_b32 v{xs+2*k}, 16, v{vX+k}')
        a(f'v_and_b32 v{xs+2*k+1}, {HI}, v{vX+k}')
    pkadd(xs + 8, xs, xs + 2); pkadd(xs + 10, xs + 4, xs + 6); pkadd(xs + 8, xs + 8, xs + 10)
    a(f'v_add_f32 v{t0}, v{xs+8}, v{xs+9}')
    allred('v_add_f32', [t0], [t1])
    a(f'v_mul_f32 v{t0}, 0x3b000000, v{t0}')
    for k in range(8): a(f'v_sub_f32 v{xs+k}, v{xs+k}, v{t0}')
    a(f'v_mul_f32 v{t2}, v{xs}, v{xs}')
    for k in range(1, 8): a(f'v_fmac_f32 v{t2}, v{xs+k}, v{xs+k}')
    allred('v_add_f32', [t2], [t1])
    a(f'v_mul_f32 v{t2}, 0x3b000000, v{t2}')
    vN = vXd
    rb(t2, t2); rb(t0, t0)
    a(f'v_add_f32 v{t2}, {EPS:#x}, v{t2}')
    a(f'v_sub_f32 v{t3}, v{vXd}, v{t0}')
    rb(t2, t2); rb(t3, t3)
    a(f'v_sqrt_f32 v{t2}, v{t2}')
    rb(t2, t2)
    a(f'v_rcp_f32 v{t4}, v{t2}')
    a(f'v_mul_f32 v{t5}, v{t3}, v{t4}')
    a(f'v_fma_f32 v{t3}, -v{t5}, v{t2}, v{t3}')
    a(f'v_fma_f32 v{t5}, v{t3}, v{t4}, v{t5}')
    rb(vN, t5)
    a(f's_and_b32 {T0}, {I}, 1')
    a(f's_lshl_b32 {T0}, {T0}, 2')
    a(f's_add_u32 {T0}, {T0}, {W}')
    a(f's_lshl_b32 {T0}, {T0}, 11')
    a(f's_add_u32 {T0}, {T0}, {E1}')
    a(f'v_add_u32 v{vH}, {T0}, v{vL16}')
    a(f'v_add_u32 v{vH+1}, {8*2048}, v{vH}')
    a(f'v_and_b32 v{t0}, 1, v{vL}')
    a(f'v_bfe_u32 v{t1}, v{vL}, 1, 3')
    a(f'v_lshlrev_b32 v{t0}, 5, v{t0}')
    a(f'v_lshl_add_u32 v{t0}, v{t1}, 2, v{t0}')
    a(f'v_add_u32 v{t0}, v{t0}, v{vR}')
    a(f's_lshl_b32 {T0}, {J}, 4')
    a(f's_add_u32 {T0}, {T0}, {I}')
    a(f's_lshl_b32 {T0}, {T0}, 8')
    a(f's_add_u32 {T0}, {T0}, {E2}')
    a(f'v_lshl_add_u32 v{vB1}, v{t0}, 2, {T0}')
    FI = sr(sFI)
    stamp(4)
    a(f's_waitcnt vmcnt({h1wait})')
    if fine == 2: stamp(12)
    vW = V.get(48); vDd = vW
    V.reset(keep_mark)
    vFG = V.get(16); vFU = V.get(16)
    vDg = V.get(4); vDu = V.get(4); vGA = V.get(); vSB = V.get(); vCB = V.get(); vMO = V.get(2)
    def late_loads(tag_):
        if tag_:
            a(f's_cmp_lg_u32 {sr(sM)}, 0')
            a(f's_cbranch_scc1 L_nolate{tag_}')
        for k in range(4):
            if bthr and k == 2: a(f's_waitcnt vmcnt({bthr-1})')
            a(f'global_load_dwordx4 {vr(vW+4*k,4)}, v{vPFA}, {sr(pWG,2)} nt')
            a(f'global_load_dwordx4 {vr(vW+16+4*k,4)}, v{vPFA}, {sr(pWU,2)} nt')
            if k < 3: a(f'v_add_u32 v{vPFA}, {8*3584}, v{vPFA}')
        if bthr: a(f's_waitcnt vmcnt({bthr-1})')
        for k in range(4):
            a(f'global_load_dwordx4 {vr(vW+32+4*k,4)}, v{aDN}, {sr(pWD,2)} nt')
            if k < 3: a(f'v_add_u32 v{aDN}, 4096, v{aDN}')
        a(f'global_load_dword v{vDUM}, v{aE8l}, {sr(sAB,2)}')
        a(f'global_load_dword v{vDUM}, v{aE8l}, {sr(sAB,2)} offset:256')
        if tag_:
            a(f's_branch L_lated{tag_}')
            a.label(f'L_nolate{tag_}')
            a('s_waitcnt vmcnt(0)')
            a.label(f'L_lated{tag_}')
    def post1(k):
        if k == 1: pkadd(vG, vG, vG + 4); pkadd(vG + 2, vG + 2, vG + 6)
        if k == 3: pkadd(vG + 8, vG + 8, vG + 12); pkadd(vG + 10, vG + 10, vG + 14)
    poll([ld4(vG, vH), ld4(vG + 4, vH, 1024), ld4(vG + 8, vH + 1), ld4(vG + 12, vH + 1, 1024)], post1, cnt_slot=(13 if fine == 2 else None), first_slot=(14 if fine == 2 else None))
    stamp(5)
    tred4([vG, vG + 8])
    rb2(t0, vG, vG + 8, t2)
    a(f'v_add_f32 v{t1}, 1.0, v{t1}')
    rb(t1, t1)
    a(f'v_mul_f32 v{t1}, v{vN}, v{t1}')
    rb(t1, t1)
    a(f'v_add_f32 v{t1}, v{t1}, v{t0}')
    a(f'v_cvt_pk_bf16_f32 v{t1}, v{t1}, v{t1}')
    a(f'ds_write_b32 v{vXW}, v{t1}')
    a(f'ds_read_b128 {vr(vH,4)}, v{vXR}')
    a(f'ds_read_b128 {vr(vH+4,4)}, v{vXR} offset:16')
    a('s_waitcnt lgkmcnt(0)')
    diag_gemv([vWQ + 4 * k for k in range(8)], [vH + k for k in range(8)])
    tile_reduce(L_TR2, vB1)
    a('s_barrier')
    stamp(6)
    if tdel2:
        a.label('L_tdel2')
        a('s_memrealtime s[98:99]')
        a('s_waitcnt lgkmcnt(0)')
        a(f's_sub_u32 {T1}, s98, s{sSTAMP}')
        a(f's_cmp_lt_u32 {T1}, {tdel2}')
        a('s_cbranch_scc1 L_tdel2')
    def wo_prefetch():
        a(f's_lshl_b32 {T0}, {J}, 9')
        a(f's_and_b32 {T1}, {I}, 1')
        a(f's_lshl_b32 {T1}, {T1}, 8')
        a(f's_add_u32 {T0}, {T0}, {T1}')
        a(f's_lshl_b32 {T1}, {W}, 6')
        a(f's_add_u32 {T0}, {T0}, {T1}')
        a(f's_lshl_b32 {T0}, {T0}, 10')
        a(f's_lshr_b32 {T1}, {I}, 1')
        a(f's_lshl_b32 {T1}, {T1}, 7')
        a(f's_add_u32 {T0}, {T0}, {T1}')
        a(f'v_lshlrev_b32 v{t0}, 10, v{vRHO}')
        a(f'v_lshl_add_u32 v{t0}, v{vC8}, 4, v{t0}')
        a(f'v_add_u32 v{t0}, {T0}, v{t0}')
        for k in range(8):
            a(f'global_load_dwordx4 {vr(vPF,4)}, v{t0}, {sr(pWO,2)}' + (' nt' if wopol else ''))
            if k < 7: a(f'v_add_u32 v{t0}, 8192, v{t0}')
    if wopf == 1: wo_prefetch()
    if not mbe: modb_loads()
    if wopf == 2: wo_prefetch()
    a(f's_lshl_b32 {T0}, {J}, 2')
    a(f's_mul_i32 {T1}, {J}, 3')
    a(f's_add_u32 {T1}, {T1}, 4')
    a(f's_cmp_ge_u32 {J}, 4')
    a(f's_cselect_b32 {T0}, {T1}, {T0}')
    a(f's_cselect_b32 {T2}, 12, 16')
    a(f's_lshl_b32 {T0}, {T0}, 2')
    a(f's_add_u32 {FI}, {T0}, {I}')
    a(f's_cmp_ge_u32 {I}, {T2}')
    a(f's_cselect_b32 {sr(sM)}, 1, 0')
    a(f's_and_b32 {T0}, {FI}, 3')
    a(f's_lshl_b32 {T0}, {T0}, 7')
    a(f's_lshl_b32 {T1}, {W}, 5')
    a(f's_add_u32 {T0}, {T0}, {T1}')
    a(f'v_add_u32 v{vPFA}, {T0}, v{vRHO}')
    a(f'v_mul_u32_u24 v{vPFA}, 3584, v{vPFA}')
    a(f's_lshr_b32 {T1}, {FI}, 2')
    a(f's_lshl_b32 {T1}, {T1}, 7')
    a(f'v_lshl_add_u32 v{vPFA}, v{vC8}, 4, v{vPFA}')
    a(f'v_add_u32 v{vPFA}, {T1}, v{vPFA}')
    a(f's_lshl_b32 {T1}, {FI}, 14')
    a(f's_lshl_b32 {T2}, {W}, 8')
    a(f's_add_u32 {T1}, {T1}, {T2}')
    a(f'v_lshlrev_b32 v{t2}, 10, v{vG4}')
    a(f'v_lshl_add_u32 v{t2}, v{vC16}, 4, v{t2}')
    a(f'v_add_u32 v{aDN}, {T1}, v{t2}')
    a(f's_lshl_b32 {T1}, {FI}, 11')
    a(f's_add_u32 {T1}, {T1}, {E8}')
    a(f'v_lshlrev_b32 v{t1}, 9, v{vG4}')
    a(f'v_lshl_add_u32 v{t1}, v{vC16}, 4, v{t1}')
    a(f'v_add_u32 v{aE8l}, {T1}, v{t1}')
    a(f's_add_u32 {sr(sAB)}, {sr(pWS)}, {LOC}')
    a(f's_addc_u32 {sr(sAB+1)}, {sr(pWS+1)}, 0')
    if late == 1: late_loads('b')
    a(f'v_lshlrev_b32 v{t0}, 16, v{vSd+2}')
    a(f'v_and_b32 v{t1}, {HI}, v{vSd+2}')
    a(f'v_lshlrev_b32 v{t2}, 16, v{vSd+3}')
    a(f'v_and_b32 v{t3}, {HI}, v{vSd+3}')
    for k in range(4): silu_dup(vSd + k, t[k], t5)
    a(f's_lshl_b32 {T0}, {J}, 4')
    a(f's_add_u32 {T0}, {T0}, {I}')
    a(f's_lshl_b32 {T0}, {T0}, 8')
    a(f's_add_u32 {T0}, {T0}, {E7}')
    a(f'v_lshl_add_u32 v{t6}, v{vC16}, 2, v{vR}')
    a(f'v_lshl_add_u32 v{vB2}, v{t6}, 2, {T0}')
    if not mbe: a('s_waitcnt vmcnt(14)' if late == 1 else ('s_waitcnt vmcnt(8)' if wopf == 2 else 's_waitcnt vmcnt(0)'))
    diag_gemv([vFD + 4 * k for k in range(4)], [vSd + k for k in range(4)])
    tile_reduce(L_TR1, vB2)
    a(f's_cmp_lg_u32 {sr(sM)}, 0')
    a('s_barrier')
    a('s_cbranch_scc1 L_COMB')
    stamp(1)
    if tdel:
        a.label('L_tdel')
        a('s_memrealtime s[98:99]')
        a('s_waitcnt lgkmcnt(0)')
        a(f's_sub_u32 {T1}, s98, s{sSTAMP}')
        a(f's_cmp_lt_u32 {T1}, {tdel}')
        a('s_cbranch_scc1 L_tdel')
    if late == 2: late_loads(None)
    a(f's_lshl_b32 {T3}, {W}, 5')
    a(f'v_lshl_add_u32 v{t5}, v{vC8}, 2, v{vR}')
    a(f'v_add_u32 v{t5}, {T3}, v{t5}')
    a(f'v_lshl_add_u32 v{aYW}, v{t5}, 1, {L_Y}' if False else f'v_lshlrev_b32 v{aYW}, 1, v{t5}')
    a(f's_and_b32 {T0}, {FI}, 3')
    a(f's_lshl_b32 {T1}, {T0}, 9')
    a(f's_add_u32 {T1}, {T1}, {E6+2048}')
    a(f'v_lshl_add_u32 v{vE6}, v{t5}, 2, {T1}')
    a(f's_lshl_b32 {T1}, {T0}, 9')
    a(f's_lshl_b32 {T3}, {W}, 7')
    a(f's_add_u32 {T1}, {T1}, {T3}')
    a(f's_add_u32 {T1}, {T1}, {E4}')
    a(f'v_mul_u32_u24 v{t0}, {RS}, v{vRHO}')
    a(f'v_lshl_add_u32 v{t0}, v{vC8}, 4, v{t0}')
    a(f'v_add_u32 v{vE4}, {T1}, v{t0}')
    a(f'v_add_u32 v{vE4+1}, {8*RS}, v{vE4}')
    a(f'v_and_b32 v{t0}, 3, v{vL}')
    a(f'v_lshlrev_b32 v{vSTR}, 3, v{t0}')
    a(f'v_lshlrev_b32 v{t1}, 8, v{t0}')
    a(f'v_lshl_add_u32 v{aYR}, v{vG4}, 4, v{t1}')
    a(f's_lshl_b32 {T3}, {W}, 3')
    a(f'v_mov_b32 v{vSTW}, {T3}')
    a(f's_andn2_b32 {T1}, {FI}, 3')
    a(f's_add_u32 {T1}, {T1}, {W}')
    a(f's_lshl_b32 {T1}, {T1}, 2')
    a(f's_add_u32 {T1}, {T1}, {T0}')
    a(f's_lshl_b32 {T1}, {T1}, 9')
    a(f's_add_u32 {T1}, {T1}, {E8}')
    a(f'v_lshl_add_u32 v{aE8s}, v{vL}, 2, {T1}')
    a(f's_lshl_b32 {T2}, {W}, 9')
    a(f's_mul_i32 {T3}, {FI}, {RS}')
    a(f's_add_u32 {T3}, {T3}, {T2}')
    a(f's_add_u32 {T3}, {T3}, {E5}')
    a(f'v_lshl_add_u32 v{vE5}, v{vL}, 2, {T3}')
    a(f's_lshl_b32 {T2}, {W}, 12')
    a(f'v_add_u32 v{vStG}, {T2}, v{vL16}')
    a(f'v_bfe_u32 v{t1}, v{vL}, 2, 2')
    a(f'v_lshlrev_b32 v{t1}, 7, v{t1}')
    a(f'v_lshl_add_u32 v{t1}, v{vG4}, 10, v{t1}')
    a(f'v_lshl_add_u32 v{t1}, v{t0}, 3, v{t1}')
    a(f's_lshl_b32 {T3}, {W}, 5')
    a(f'v_add_u32 v{aTG}, {T3}, v{t1}')
    a(f'v_bfe_u32 v{t1}, v{vL}, 2, 2')
    a(f'v_lshl_add_u32 v{t1}, v{t1}, 2, v{vR}')
    a(f'v_lshlrev_b32 v{t1}, 8, v{t1}')
    a(f'v_lshl_add_u32 v{t1}, v{t0}, 3, v{t1}')
    a(f'v_add_u32 v{aTD}, {T2}, v{t1}')
    a(f'v_bfe_u32 v{t1}, v{vL}, 2, 2')
    for k, r in enumerate((vC0, vC1, vC2)):
        a(f'v_cmp_eq_u32 vcc, {k}, v{t1}')
        a(f'v_cndmask_b32 v{r}, 0, 1.0, vcc')
    a(f's_mov_b32 {sr(sQ1)}, 0xffff0000')
    a(f's_mov_b32 {sr(sQ1+1)}, 0')
    a(f's_mov_b32 {sr(sQ2)}, 0')
    a(f's_mov_b32 {sr(sQ2+1)}, 0x0000ffff')
    a(f's_mov_b32 {sr(sQ3)}, 0')
    a(f's_mov_b32 {sr(sQ3+1)}, 0xffff0000')
    a(f's_mov_b32 {sr(sSC)}, 0xf000f000')
    a(f's_mov_b32 {sr(sSC+1)}, 0xf000f000')
    a(f's_mov_b32 {sr(sM)}, 0')
    a(f's_mov_b32 {sr(sM+1)}, 0x80000000')
    order = []
    for k in range(4): order += [(vW + 4 * k, L_BIG + 1024 * k), (vW + 16 + 4 * k, L_BIG + 16384 + 1024 * k)]
    order += [(vW + 32 + 4 * k, L_BIG + 32768 + 1024 * k) for k in range(4)]
    for k, (r, off) in enumerate(order):
        a(f's_waitcnt vmcnt({13-k})')
        a(f'ds_write_b128 v{vStG}, {vr(r,4)} offset:{off}')
    for tau in range(8):
        a(f'ds_read_b64_tr_b16 {vr(vFD+2*tau,2)}, v{aTD} offset:{L_BIG+32768+32*tau}')
    a('s_waitcnt lgkmcnt(0)')
    a('s_barrier')
    for m, base in ((0, vFG), (1, vFU)):
        for sg in range(4):
            for aa in range(2):
                a(f'ds_read_b64_tr_b16 {vr(base+4*sg+2*aa,2)}, v{aTG} offset:{L_BIG+16384*m+4096*sg+512*aa}')
    stamp(7)
    if exp: a('s_branch L_A_done')
    def post4(k):
        if k == 2:
            a(f'v_add_f32 v{vCB}, 1.0, v{vCB}')
            rb(vCB, vCB)
            a(f'ds_write_b16_d16_hi v{aYW}, v{vCB} offset:{L_Y+512}')
            a(f'ds_write_b16_d16_hi v{aYW}, v{vSB} offset:{L_Y+768}')
            stamp(8)
        if k == 4: pkadd(vG, vG, vG + 4); pkadd(vG + 2, vG + 2, vG + 6)
    poll([ld1(vGA, vE6, -2048), ld1(vSB, vE6), ld1(vCB, vE6, 2048), ld4(vG, vE4), ld4(vG + 4, vE4 + 1)], post4)
    stamp(9)
    tred4([vG])
    dpp_red('v_add_f32', [vG], 'row_ror:8')
    rb(vG, vG)
    a(f'v_mul_f32 v{vG}, v{vGA}, v{vG}')
    rb(vG, vG)
    a(f'v_add_f32 v{vG}, v{vX1}, v{vG}')
    rb(vX1, vG)
    a(f'v_mul_f32 v{t2}, v{vX1}, v{vCB}')
    a(f'v_readfirstlane_b32 {T0}, v{vX1}')
    a(f'v_cvt_pk_bf16_f32 v{t3}, v{t2}, v{t2}')
    a(f'v_and_b32 v{t4}, {HI}, v{t3}')
    a(f'v_subrev_f32 v{t0}, {T0}, v{vX1}')
    a(f'v_sub_f32 v{t2}, v{t2}, v{t4}')
    a(f'v_mul_f32 v{t1}, v{t0}, v{t0}')
    a(f'ds_write_b16 v{aYW}, v{t3} offset:{L_Y}')
    a(f'ds_write_b16_d16_hi v{aYW}, v{t2} offset:{L_Y+256}')
    red63([t0, t1])
    a(f'v_mul_f32 v{t2}, 0x3c800000, v{t0}')
    a(f'v_add_f32 v{vG}, {T0}, v{t2}')
    a(f'v_fma_f32 v{vG+1}, -v{t2}, v{t0}, v{t1}')
    a(f's_mov_b64 exec, {sr(sM,2)}')
    a(f'ds_write_b64 v{vSTW}, {vr(vG,2)} offset:{L_ST}')
    a('s_mov_b64 exec, -1')
    a('s_waitcnt lgkmcnt(0)')
    if fine != 2: stamp(13)
    a('s_barrier')
    if fine != 2: stamp(14)
    a(f'ds_read_b64 {vr(vG,2)}, v{vSTR} offset:{L_ST}')
    for sg in range(4): a(f'ds_read_b128 {vr(vA+4*sg,4)}, v{aYR} offset:{L_Y+64*sg}')
    def mm(sg):
        a(f's_waitcnt lgkmcnt({3-sg})')
        a(f'v_mfma_f32_16x16x32_bf16 {vr(vDg,4)}, {vr(vA+4*sg,4)}, {vr(vFG+4*sg,4)}, ' + ('0' if sg == 0 else vr(vDg, 4)))
        a(f'v_mfma_f32_16x16x32_bf16 {vr(vDu,4)}, {vr(vA+4*sg,4)}, {vr(vFU+4*sg,4)}, ' + ('0' if sg == 0 else vr(vDu, 4)))
    mm(0)
    a(f'v_add_f32_dpp v{t0}, v{vG}, v{vG} {Q1} {DPP}')
    mm(1)
    dpp_red('v_add_f32', [t0], Q2)
    a(f'v_mul_f32 v{vMO}, 0x3e800000, v{t0}')
    mm(2)
    a(f'v_sub_f32 v{t1}, v{vG}, v{vMO}')
    a(f'v_mul_f32 v{t2}, 0x42800000, v{t1}')
    a(f'v_fmac_f32 v{vG+1}, v{t1}, v{t2}')
    mm(3)
    dpp_red('v_add_f32', [vG + 1], Q1)
    a(f'v_and_b32 v{t3}, 1, v{vL}')
    a(f'v_cmp_eq_u32 vcc, 1, v{t3}')
    dpp_red('v_add_f32', [vG + 1], Q2)
    a(f'v_mul_f32 v{vMO+1}, 0.5, v{vG+1}')
    a(f'v_cndmask_b32 v{t3}, v{vMO}, v{vMO+1}, vcc')
    for d, tt in ((vDg, vDg + 1), (vDu, vDu + 1)):
        a(f'v_add_f32 v{d}, v{d}, v{d+1}')
        a(f'v_cndmask_b32 v{tt}, v{d}, v{d+2}, {sr(sQ1,2)}')
        a(f'v_cndmask_b32 v{tt}, v{tt}, v{d+3}, {sr(sQ2,2)}')
        a(f'v_cndmask_b32 v{tt}, v{tt}, v{t3}, {sr(sQ3,2)}')
        tag(tt)
        a(f'global_store_dword v{aE8s}, v{tt}, {sr(sAB,2)} offset:{0 if d == vDg else 256}')
    def st8():
        a(f'global_store_dword v{aE8s}, v{vDg+1}, {WS} sc1')
        a(f'global_store_dword v{aE8s}, v{vDu+1}, {WS} offset:256 sc1')
    stamp(10)
    l8 = [(x.replace(WS, sr(sAB, 2)), r) for x, r in [ld4(vG, aE8l), ld4(vG + 4, aE8l, 256)]]
    def post8(k):
        if k == 0:
            a(f's_mov_b64 exec, {sr(sSC,2)}')
            a(f'v_sub_f32 v{vG}, v{vG}, v{vMO}')
            a(f'v_mul_f32 v{t0}, 0x43000000, v{vG}')
            a(f'v_fmac_f32 v{vG+1}, v{t0}, v{vG}')
            a('s_mov_b64 exec, -1')
    poll(l8, post8, alt=True, late_st=st8)
    if fine != 2: stamp(12)
    tred4([vG, vG + 4])
    a(f'v_readlane_b32 {T0}, v{vG}, 12')
    a(f'v_readlane_b32 {T1}, v{vG}, 44')
    a(f'v_mul_f32 v{t0}, 0x3e800000, {T0}' if False else f'v_mov_b32 v{t0}, {T0}')
    a(f'v_mul_f32 v{t1}, 0xc2000000, v{t0}')
    a(f'v_fma_f32 v{t2}, v{t1}, v{t0}, {T1}')
    a(f'v_mul_f32 v{t2}, 0x3b000000, v{t2}')
    a(f'v_fmac_f32 v{vMO}, 0x3e800000, v{t0}')
    rb(t2, t2)
    a(f'v_add_f32 v{t2}, {EPS:#x}, v{t2}')
    rb(t2, t2)
    a(f'v_sqrt_f32 v{t2}, v{t2}')
    rb(vMO, vMO)
    rb(t2, t2)
    a(f'v_rcp_f32 v{t2}, v{t2}')
    a(f'v_fma_f32 v{t3}, -v{vMO}, v{vC1}, v{vC0}')
    a(f'v_fma_f32 v{t3}, v{t3}, v{t2}, v{vC2}')
    a(f'v_mul_f32 v{vG}, v{vG}, v{t3}')
    a(f'v_mul_f32 v{vG+4}, v{vG+4}, v{t3}')
    dpp_red('v_add_f32', [vG, vG + 4], 'row_ror:4')
    dpp_red('v_add_f32', [vG, vG + 4], 'row_ror:8')
    rb2(t0, vG, vG + 4, t2)
    a(f'v_mul_f32 v{t0}, v{t0}, v{t1}')
    for k in range(4): a(f'v_mov_b32_dpp v{vG+k}, v{t0} quad_perm:[{k},{k},{k},{k}] {DPP}')
    a(f'v_cvt_pk_bf16_f32 v{vA}, v{vG}, v{vG+1}')
    a(f'v_cvt_pk_bf16_f32 v{vA+1}, v{vG+2}, v{vG+3}')
    for tau in range(8):
        a(f'v_mfma_f32_16x16x16_bf16 {vr(vDd+4*tau,4)}, {vr(vA,2)}, {vr(vFD+2*tau,2)}, 0')
    for hlf, tt in ((0, t0), (1, t1)):
        b = vDd + 16 * hlf
        a(f'v_cndmask_b32 v{tt}, v{b}, v{b+4}, {sr(sQ1,2)}')
        a(f'v_cndmask_b32 v{tt}, v{tt}, v{b+8}, {sr(sQ2,2)}')
        a(f'v_cndmask_b32 v{tt}, v{tt}, v{b+12}, {sr(sQ3,2)}')
        tag(tt)
        a(f'global_store_dword v{vE5}, v{tt}, {WS} offset:{256*hlf} sc1')
    stamp(11)
    st8()
    finish()

    a.label('L_COMB')
    a(f's_lshl_b32 {T0}, {J}, 2')
    a(f's_add_u32 {FI}, {T0}, {I}')
    a(f's_sub_u32 {FI}, {FI}, 28')
    a(f's_add_u32 {T1}, {FI}, 112')
    a(f's_mul_i32 {T1}, {T1}, {RS}')
    a(f's_lshl_b32 {T2}, {W}, 9')
    a(f's_add_u32 {T1}, {T1}, {T2}')
    a(f's_add_u32 {T1}, {T1}, {E5}')
    a(f'v_lshl_add_u32 v{t3}, v{vL}, 2, {T1}')
    a(f'global_store_dword v{t3}, v{vT}, {WS} sc1')
    a(f'global_store_dword v{t3}, v{vT}, {WS} offset:256 sc1')
    a(f's_cmp_ge_u32 {W}, 2')
    a('s_cbranch_scc1 L_comb_done')
    a(f's_lshl_b32 {T0}, {FI}, 1')
    a(f's_add_u32 {T0}, {T0}, {W}')
    a(f's_lshl_b32 {T1}, {T0}, 10')
    a(f's_add_u32 {T1}, {T1}, {E7}')
    a(f'v_add_u32 v{t0}, {T1}, v{vL16}')
    a(f's_lshl_b32 {T1}, {T0}, 8')
    a(f's_add_u32 {T1}, {T1}, {E6}')
    a(f'v_lshl_add_u32 v{t1}, v{vC16}, 2, v{vR}')
    a(f'v_lshl_add_u32 v{t1}, v{t1}, 2, {T1}')
    stamp(7)
    poll([ld4(vG, t0)])
    tred4([vG])
    rb(vG, vG)
    a(f'v_or_b32 v{vG}, v{vG}, v{vT}')
    a(f'global_store_dword v{t1}, v{vG}, {WS} sc1')
    stamp(8)
    a.label('L_comb_done')
    finish()

    V.reset(common_mark)
    hAd = V.get(6); hX = V.get()
    a.label('L_helperA')
    if exp == 2: a('s_endpgm')
    sS = Y
    a(f'v_bfe_u32 v{t3}, v{vL}, 4, 1')
    a(f'v_lshrrev_b32 v{t4}, 5, v{vL}')
    a(f'v_lshl_add_u32 v{vR}, v{t3}, 1, v{t4}')
    a(f's_mov_b32 {HI}, 0xffff0000')
    a(f'v_bfe_u32 v{t0}, v{vL}, 2, 2')
    a(f'v_lshlrev_b32 v{t0}, 10, v{t0}')
    a(f'v_lshl_add_u32 v{t0}, v{t4}, 9, v{t0}')
    a(f'v_lshl_add_u32 v{t0}, v{t3}, 6, v{t0}')
    a(f'v_and_b32 v{t1}, 3, v{vL}')
    a(f'v_lshl_add_u32 v{t0}, v{t1}, 4, v{t0}')
    a(f's_lshl_b32 {T0}, {J}, 12')
    a(f's_add_u32 {T0}, {T0}, {E2}')
    a(f'v_add_u32 v{hAd}, {T0}, v{t0}')
    a('s_waitcnt lgkmcnt(0)')
    epoch_load()
    if touch:
        a(f's_lshl_b32 {T1}, {J}, 4')
        a(f's_add_u32 {T1}, {T1}, {sS}')
        a(f's_mul_i32 {T2}, {T1}, {RS}')
        a(f's_add_u32 {T2}, {T2}, {E3+LOC}')
        a(f'v_lshl_add_u32 v{t3}, v{vL}, 5, {T2}')
        a(f'global_load_dword v{vDUM}, v{t3}, {WS}')
        a(f's_mul_i32 {T2}, {T1}, {MS}')
        a(f's_add_u32 {T2}, {T2}, {E3ML+LOC}')
        a(f'v_lshl_add_u32 v{t3}, v{vL}, 3, {T2}')
        a(f'global_load_dword v{vDUM}, v{t3}, {WS}')
    a('s_waitcnt vmcnt(0)')
    epoch_use()
    poll([ld4(vG + 8 * u + 4 * i, hAd, 256 * u + 128 * i) for u in range(2) for i in range(2)])
    for k in range(4): pkadd(vG + 2 * k, vG + 2 * k, vG + 8 + 2 * k)
    for k in range(4): a(f'v_cvt_pk_bf16_f32 v{vA+k}, v{vG+2*k}, v{vG+2*k+1}')
    a(f'ds_write_b128 v{vL16}, {vr(vA,4)} offset:{L_Q}')
    stamp(2)
    a(f's_cmp_ge_u32 {sS}, 2')
    a('s_waitcnt lgkmcnt(0)')
    a('s_barrier')
    a('s_cbranch_scc1 L_A_done')
    a(f's_lshl_b32 {FI}, {J}, 1')
    a(f's_add_u32 {FI}, {FI}, {sS}')
    a(f's_lshl_b32 {T0}, {FI}, 7')
    a(f'v_mul_u32_u24 v{t0}, {RS}, v{vRHO}')
    a(f'v_lshl_add_u32 v{t0}, v{vC8}, 4, v{t0}')
    a(f'v_add_u32 v{t0}, {T0}, v{t0}')
    a(f'v_lshl_add_u32 v{t1}, v{vC8}, 2, v{vR}')
    a(f'v_add_u32 v{hAd}, {E4}, v{t0}')
    a(f'v_add_u32 v{hAd+1}, {8*RS}, v{hAd}')
    a(f'v_lshl_add_u32 v{t2}, v{t1}, 2, {T0}')
    a(f'v_add_u32 v{hAd+2}, {E6+3072}, v{t2}')
    a(f'v_lshrrev_b32 v{hAd+3}, 1, v{t2}')
    a(f'v_lshlrev_b32 v{hAd+4}, 2, v{t1}')
    a(f'v_mov_b32 v{hX}, 0')
    a(f's_mov_b32 {sr(sM)}, 0x00ff00ff')
    a(f's_mov_b32 {sr(sM+1)}, 0x00ff00ff')
    a('s_barrier')
    a('s_barrier')
    a(f'global_load_short_d16_hi v{hX}, v{hAd+3}, {sr(pX,2)}')
    poll([ld1(vG + 8, hAd + 2, -3072), ld1(vG + 9, hAd + 2, 3072), ld4(vG, hAd), ld4(vG + 4, hAd + 1)])
    pkadd(vG, vG, vG + 4); pkadd(vG + 2, vG + 2, vG + 6)
    tred4([vG])
    dpp_red('v_add_f32', [vG], 'row_ror:8')
    rb(vG, vG)
    a(f'v_mul_f32 v{vG}, v{vG+8}, v{vG}')
    rb(vG, vG)
    a(f'v_add_f32 v{vG}, v{hX}, v{vG}')
    rb(hX, vG)
    stamp(11)
    a('s_barrier')
    for k in range(4): a(f'ds_read_b32 v{vG+k}, v{hAd+4} offset:{L_FIN+128*k}')
    a('s_waitcnt lgkmcnt(0)')
    pkadd(vG, vG, vG + 2)
    a(f'v_add_f32 v{vG}, v{vG}, v{vG+1}')
    rb(vG, vG)
    a(f'v_mul_f32 v{vG}, v{vG+9}, v{vG}')
    rb(vG, vG)
    a(f'v_add_f32 v{vG}, v{hX}, v{vG}')
    a(f'v_cvt_pk_bf16_f32 v{vG}, v{vG}, v{vG}')
    a(f's_mov_b64 exec, {sr(sM,2)}')
    a(f'global_store_short v{hAd+3}, v{vG}, {sr(pOUT,2)}')
    stamp(12)
    a(f's_cmp_lg_u32 {FI}, 0')
    a('s_cbranch_scc1 L_A_done')
    a('s_mov_b64 exec, 1')
    a(f'v_mov_b32 v{t0}, 0')
    a(f'global_store_dword v{t0}, v{vE}, {WS} sc1')
    if dbl:
        a('s_memrealtime s[98:99]')
        a('s_waitcnt lgkmcnt(0)')
        a(f's_sub_u32 {T0}, s98, s96')
        a(f's_mul_i32 {T0}, {T0}, {dbl}')
        a(f's_min_u32 {T0}, {T0}, 20000')
        a.label('L_dbl')
        a('s_memrealtime s[96:97]')
        a('s_waitcnt lgkmcnt(0)')
        a(f's_sub_u32 {T1}, s96, s98')
        a(f's_cmp_lt_u32 {T1}, {T0}')
        a('s_cbranch_scc1 L_dbl')
    a('s_branch L_A_done')

    V.reset(a_mark)
    vAd = V.get(1)
    a.label('L_A0')
    if exp == 1: a('s_endpgm')
    a(f's_cmp_eq_u32 {W}, 4')
    a('s_cbranch_scc1 L_helperA')
    a(f'v_bfe_u32 v{t0}, v{vL}, 2, 2')
    a(f'v_and_b32 v{t3}, 3, v{vL}')
    a(f'v_lshlrev_b32 v{t0}, 8, v{t0}')
    a(f'v_lshl_add_u32 v{t0}, v{vG4}, 6, v{t0}')
    a(f'v_lshl_add_u32 v{vKo}, v{t3}, 4, v{t0}')
    if kvmap == 0:
        a(f'v_add_u32 v{vKo+1}, 8192, v{vKo}')
        a(f'v_add_u32 v{aV2}, 8192, v{vL16}')
        a(f's_lshl_b32 {T0}, {J}, 24')
        a(f's_lshl_b32 {T1}, {Y}, 16')
        a(f's_lshl_b32 {T2}, {W}, 14')
        a(f's_add_u32 {T0}, {T0}, {T1}')
        a(f's_add_u32 {T0}, {T0}, {T2}')
        a(f's_add_u32 {T0}, {T0}, {(65536-4096)*256+4096}')
    else:
        a(f's_mul_i32 {T0}, {J}, {jph << 16}')
        a(f's_lshl_b32 {T1}, {Y}, 12')
        a(f's_lshl_b32 {T2}, {W}, 10')
        a(f's_add_u32 {T0}, {T0}, {T1}')
        a(f's_add_u32 {T0}, {T0}, {T2}')
        a(f's_and_b32 {T0}, {T0}, 0xfffff')
        a(f'v_add_u32 v{vKo}, {T0}, v{vKo}')
        a(f's_add_u32 {T0}, {T0}, {vph << 16}')
        a(f's_and_b32 {T0}, {T0}, 0xfffff')
        a(f'v_add_u32 v{aV2}, {T0}, v{vL16}')
        a(f's_lshl_b32 {T0}, {J}, 24')
        a(f's_add_u32 {T0}, {T0}, {(65536-4096)*256}')
    a('s_waitcnt lgkmcnt(0)')
    stamp(1)
    a(f's_add_u32 {sr(pK)}, {sr(pK)}, {T0}')
    a(f's_addc_u32 {sr(pK+1)}, {sr(pK+1)}, 0')
    epoch_load()
    if adelay >= 1: a('s_waitcnt vmcnt(0)')
    if adelay >= 2:
        a(f'global_load_dword v{vE}, v{vZ}, {WS} offset:0 sc1')
        a(f'global_load_dword v{t3}, v{vZ}, {sr(pOUT,2)} sc1')
        a('s_waitcnt vmcnt(0)')
    for k in range(16):
        if athr and k == athr: a(f's_waitcnt vmcnt({aw})')
        if kvmap == 0: a(f'global_load_dwordx4 {vr(vK+4*k,4)}, v{vKo+k//8}, {sr(pK,2)} offset:{1024*(k%8)-4096} nt')
        else:
            a(f'global_load_dwordx4 {vr(vK+4*k,4)}, v{vKo}, {sr(pK,2)} nt')
            a(f'v_add_u32 v{vKo}, 0x10000, v{vKo}')
            a(f'v_and_b32 v{vKo}, 0xfffff, v{vKo}')
    a(f's_add_u32 {sr(pV)}, {sr(pV)}, {T0}')
    a(f's_addc_u32 {sr(pV+1)}, {sr(pV+1)}, 0')
    for k in range(vsplit):
        if kvmap == 0: a(f'global_load_dwordx4 {vr(vV+4*k,4)}, v{vL16 if k<8 else aV2}, {sr(pV,2)} offset:{1024*(k%8)-4096} nt')
        else:
            a(f'global_load_dwordx4 {vr(vV+4*((k+vph)&15),4)}, v{aV2}, {sr(pV,2)} nt')
            a(f'v_add_u32 v{aV2}, 0x10000, v{aV2}')
            a(f'v_and_b32 v{aV2}, 0xfffff, v{aV2}')

    a(f'v_bfe_u32 v{t3}, v{vL}, 4, 1')
    a(f'v_lshrrev_b32 v{t4}, 5, v{vL}')
    a(f'v_lshl_add_u32 v{vR}, v{t3}, 1, v{t4}')
    common_consts()
    a(f'v_and_b32 v{t0}, 1, v{vL}')
    a(f'v_lshlrev_b32 v{t0}, 4, v{t0}')
    a(f'v_mov_b32 v{t1}, 0xffff')
    a(f'v_lshlrev_b32 v{t0}, v{t0}, v{t1}')
    a(f'v_and_b32 v{t1}, 2, v{vL}')
    a(f'v_cmp_eq_u32 vcc, 0, v{t1}')
    a(f'v_cndmask_b32 v{vN0}, 0, v{t0}, vcc')
    a(f'v_cndmask_b32 v{vN1}, v{t0}, 0, vcc')
    for sq, val in ((sQ1, 0x22222222), (sQ2, 0x44444444), (sQ3, 0x88888888)):
        a(f's_mov_b32 {sr(sq)}, {val:#x}'); a(f's_mov_b32 {sr(sq+1)}, {val:#x}')
    a(f's_mov_b32 {sr(sSC)}, {SCALE:#x}')
    a(f's_mov_b32 {sr(sSC+1)}, {SCALE:#x}')
    a(f's_and_b32 {T0}, {sS}, 1')
    a(f's_lshl_b32 {T0}, {T0}, 1')
    a(f's_lshr_b32 {T1}, {W}, 1')
    a(f's_add_u32 {sr(sM)}, {T0}, {T1}')
    a(f's_and_b32 {sr(sM+1)}, {W}, 1')
    a(f's_lshl_b32 {T0}, {J}, 9')
    a(f's_lshl_b32 {T1}, {sr(sM)}, 7')
    a(f's_add_u32 {T0}, {T0}, {T1}')
    a(f's_lshl_b32 {T1}, {sr(sM+1)}, 2')
    a(f's_add_u32 {T0}, {T0}, {T1}')
    a(f's_lshl_b32 {T0}, {T0}, 10')
    a(f's_lshr_b32 {T1}, {sS}, 1')
    a(f's_lshl_b32 {T1}, {T1}, 7')
    a(f's_add_u32 {T0}, {T0}, {T1}')
    a(f'v_lshlrev_b32 v{t0}, 14, v{vRHO}')
    a(f'v_lshl_add_u32 v{t0}, v{vC8}, 4, v{t0}')
    a(f'v_add_u32 v{vKo}, {T0}, v{t0}')
    a(f'v_add_u32 v{vKo+1}, 8192, v{vKo}')
    aE3, aML, aRw, aE4 = vPF, vPF + 1, vPF + 2, vPF + 3
    aMLw, aMLr, aRr, aE3s, aMLs = vAd, t9, t7, t6, t5
    a(f's_mul_i32 {T0}, {J}, {16*RS}')
    a(f's_lshl_b32 {T1}, {sr(sM)}, 9')
    a(f's_add_u32 {T0}, {T0}, {T1}')
    a(f's_lshl_b32 {T1}, {sr(sM+1)}, 8')
    a(f's_add_u32 {T0}, {T0}, {T1}')
    a(f's_add_u32 {T0}, {T0}, {E3}')
    a(f'v_mul_u32_u24 v{t0}, {RS}, v{vG4}')
    a(f'v_lshl_add_u32 v{t0}, v{vC16}, 4, v{t0}')
    a(f'v_add_u32 v{aE3}, {T0}, v{t0}')
    a(f's_mul_i32 {T0}, {J}, {16*MS}')
    a(f's_lshl_b32 {T1}, {sr(sM)}, 7')
    a(f's_add_u32 {T0}, {T0}, {T1}')
    a(f's_add_u32 {T0}, {T0}, {E3ML+6*MS}')
    a(f'v_mul_u32_u24 v{t0}, {MS}, v{vG4}'); a(f'v_add_u32 v{aML}, {T0}, v{t0}')
    a(f's_lshl_b32 {T1}, {W}, 11')
    a(f'v_add_u32 v{aRw}, {T1}, v{vL16}')
    a(f's_lshl_b32 {T0}, {W}, 3')
    a(f'v_lshl_add_u32 v{aMLw}, v{vL}, 3, {T0}')
    a(f's_lshl_b32 {T1}, {W}, 5')
    a(f'v_and_b32 v{t0}, 3, v{vL}')
    a(f'v_lshl_add_u32 v{aMLr}, v{t0}, 3, {T1}')
    a(f'v_and_b32 v{t0}, 31, v{vL}')
    a(f'v_lshlrev_b32 v{t0}, 3, v{t0}')
    a(f'v_lshl_add_u32 v{t0}, v{t4}, 10, v{t0}')
    a(f's_lshl_b32 {T1}, {W}, 8')
    a(f'v_add_u32 v{aRr}, {T1}, v{t0}')
    a(f's_lshl_b32 {T1}, {J}, 4')
    a(f's_add_u32 {T1}, {T1}, {sS}')
    a(f's_mul_i32 {T2}, {T1}, 5')
    a(f's_add_u32 {T2}, {T2}, {W}')
    a(f's_lshl_b32 {T2}, {T2}, 7')
    a(f's_add_u32 {T2}, {T2}, {E3ML}')
    a(f'v_mov_b32 v{aMLs}, {T2}')
    a(f's_mul_i32 {T1}, {T1}, {RS}')
    a(f's_lshl_b32 {T0}, {W}, 9')
    a(f's_add_u32 {T1}, {T1}, {T0}')
    a(f's_add_u32 {T1}, {T1}, {E3}')
    a(f'v_lshl_add_u32 v{aE3s}, v{vL}, 3, {T1}')
    a(f's_lshl_b32 {T0}, {J}, 1')
    a(f's_and_b32 {T1}, {sS}, 1')
    a(f's_add_u32 {T0}, {T0}, {T1}')
    a(f's_mul_i32 {T0}, {T0}, {RS}')
    a(f's_lshr_b32 {T1}, {sS}, 1')
    a(f's_lshl_b32 {T1}, {T1}, 8')
    a(f's_add_u32 {T0}, {T0}, {T1}')
    a(f's_add_u32 {T0}, {T0}, {E4}')
    a(f'v_lshl_add_u32 v{t0}, v{vC16}, 2, v{vR}')
    a(f'v_lshl_add_u32 v{aE4}, v{t0}, 2, {T0}')
    a(f's_waitcnt vmcnt({16+vsplit})')
    epoch_use()
    a(f's_add_u32 {sr(sAB)}, {sr(pWS)}, {LOC}')
    a(f's_addc_u32 {sr(sAB+1)}, {sr(pWS+1)}, 0')
    stamp(2)
    if vst:
        a('s_waitcnt vmcnt(0)')
        stamp(13)
    a('s_barrier')
    stamp(3)
    a(f'ds_read_b128 {vr(vQ,4)}, v{vL16} offset:{L_Q}')
    for k in range(vsplit, 16):
        a(f'global_load_dwordx4 {vr(vV+4*k,4)}, v{vL16 if k<8 else aV2}, {sr(pV,2)} offset:{1024*(k%8)-4096} nt')
    a('s_waitcnt vmcnt(16) lgkmcnt(0)')
    stamp(4)
    zS = vD
    def smfma(k): a(f'v_mfma_f32_16x16x32_bf16 {vr(vS+4*(k%4),4)}, {vr(vK+4*k,4)}, {vr(vQ,4)}, 0')
    def sdpp(k):
        d = vS + 4 * (k % 4); o = vG + k
        a(f'v_mov_b32_dpp v{o}, v{d} quad_perm:[0,0,0,0] {DPP}')
        for r in range(1, 4): a(f'v_add_f32_dpp v{o}, v{d+r}, v{o} quad_perm:[{r},{r},{r},{r}] {DPP}')
    LEAD = 3
    for k in range(LEAD): smfma(k)
    for k in range(16):
        if k + LEAD < 16: smfma(k + LEAD)
        sdpp(k)
        if wopos == 0 and k % 2 == 0: a(f'global_load_dwordx4 {vr(vWO+2*k,4)}, v{vKo+k//8}, {sr(pWO,2)} offset:{1024*((k//2)%4)} nt')
        if k % 4 == 3:
            z = zS + k // 4; b = vG + k - 3
            a(f'v_cndmask_b32 v{z}, v{b}, v{b+1}, {sr(sQ1,2)}')
            a(f'v_cndmask_b32 v{z}, v{z}, v{b+2}, {sr(sQ2,2)}')
            a(f'v_cndmask_b32 v{z}, v{z}, v{b+3}, {sr(sQ3,2)}')
    zM, zL = vG + 28, vG + 29
    zP = vG + 8
    a(f'v_cvt_pk_bf16_f32 v{t0}, v{zS}, v{zS+1}')
    a(f'v_cvt_pk_bf16_f32 v{t1}, v{zS+2}, v{zS+3}')
    a(f'v_lshlrev_b32 v{vG}, 16, v{t0}')
    a(f'v_and_b32 v{vG+1}, {HI}, v{t0}')
    a(f'v_lshlrev_b32 v{vG+2}, 16, v{t1}')
    a(f'v_and_b32 v{vG+3}, {HI}, v{t1}')
    a(f'v_pk_mul_f32 {vr(vG,2)}, {vr(vG,2)}, {sr(sSC,2)}')
    a(f'v_pk_mul_f32 {vr(vG+2,2)}, {vr(vG+2,2)}, {sr(sSC,2)}')
    a(f'v_cvt_pk_bf16_f32 v{t0}, v{vG}, v{vG+1}')
    a(f'v_cvt_pk_bf16_f32 v{t1}, v{vG+2}, v{vG+3}')
    a(f'v_lshlrev_b32 v{vG}, 16, v{t0}')
    a(f'v_and_b32 v{vG+1}, {HI}, v{t0}')
    a(f'v_lshlrev_b32 v{vG+2}, 16, v{t1}')
    a(f'v_and_b32 v{vG+3}, {HI}, v{t1}')
    a(f'v_max3_f32 v{zM}, v{vG}, v{vG+1}, v{vG+2}')
    a(f'v_max_f32 v{zM}, v{zM}, v{vG+3}')
    dpp_red('v_max_f32', [zM], Q1); dpp_red('v_max_f32', [zM], Q2)
    swap_red('v_max_f32', [zM], 16, [t1]); swap_red('v_max_f32', [zM], 32, [t1])
    for k in range(4): a(f'v_sub_f32 v{vG+k}, v{vG+k}, v{zM}')
    for k in range(4): a(f'v_mul_f32 v{vG+k}, {sr(sLOG2E)}, v{vG+k}')
    for k in range(4): a(f'v_exp_f32 v{vG+k}, v{vG+k}')
    for k in range(4): a(f'v_cvt_pk_bf16_f32 v{zP+k}, v{vG+k}, v{vG+k}')
    pkadd(vG, vG, vG + 2)
    a(f'v_add_f32 v{zL}, v{vG}, v{vG+1}')
    stamp(5)
    lsteps = [lambda: dpp_red('v_add_f32', [zL], Q1), lambda: dpp_red('v_add_f32', [zL], Q2),
              lambda: a(f'v_mov_b32 v{t1}, v{zL}'),
              lambda: (a(f'v_permlane16_swap_b32 v{zL}, v{t1}'), a(f'v_add_f32 v{zL}, v{zL}, v{t1}')),
              lambda: a(f'v_mov_b32 v{t1}, v{zL}'),
              lambda: (a(f'v_permlane32_swap_b32 v{zL}, v{t1}'), a(f'v_add_f32 v{zL}, v{zL}, v{t1}'))]
    for p0 in range(8):
        p = (p0 + (vph // 2 if kvmap else 0)) & 7
        ab = vA + 4 * (p0 % 4)
        for k in range(2):
            tt = 2 * p + k; src = zP + tt // 4; q = tt & 3
            a(f'v_and_b32_dpp v{ab+2*k}, v{src}, v{vN0} quad_perm:[{q},{q},{q},{q}] {DPP}')
            a(f'v_and_b32_dpp v{ab+2*k+1}, v{src}, v{vN1} quad_perm:[{q},{q},{q},{q}] {DPP}')
        a(f's_waitcnt vmcnt({14-p0 if wopos else 22-2*p0})')
        if p0 == 7: stamp(14)
        a(f'v_swap_b32 v{vV+8*p+2}, v{vV+8*p+4}')
        a(f'v_swap_b32 v{vV+8*p+3}, v{vV+8*p+5}')
        if p0 < 6: lsteps[p0]()
        a(f'v_mfma_f32_16x16x32_bf16 {vr(vO,4)}, {vr(ab,4)}, {vr(vV+8*p,4)}, ' + ('0' if p0 == 0 else vr(vO, 4)))
        a(f'v_mfma_f32_16x16x32_bf16 {vr(vO+4,4)}, {vr(ab,4)}, {vr(vV+8*p+4,4)}, ' + ('0' if p0 == 0 else vr(vO + 4, 4)))
        if wopos: a(f'global_load_dwordx4 {vr(vWO+4*p0,4)}, v{vKo+p0//4}, {sr(pWO,2)} offset:{1024*(p0%4)} nt')
    stamp(6)
    a('s_mov_b64 exec, 0x1111')
    a(f'ds_write_b64 v{aMLw}, {vr(zM,2)} offset:{L_ML}')
    a('s_mov_b64 exec, -1')
    a(f'ds_write_b128 v{aRw}, {vr(vO,4)} offset:{L_BIG}')
    a(f'ds_write_b128 v{aRw}, {vr(vO+4,4)} offset:{L_BIG+1024}')
    a('s_waitcnt lgkmcnt(0)')
    if fine == 1: stamp(1)
    a('s_barrier')
    if fine == 1: stamp(2)
    a(f'ds_read_b64 {vr(zM,2)}, v{aMLr} offset:{L_ML}')
    for k in range(4): a(f'ds_read_b64 {vr(vG+2*k,2)}, v{aRr} offset:{L_BIG+2048*k}')
    a('s_waitcnt lgkmcnt(4)')
    zA = vK + 20; zO = vK + 16
    a(f'v_max_f32_dpp v{zA}, v{zM}, v{zM} {Q1} {DPP}')
    dpp_red('v_max_f32', [zA], Q2)
    a(f'v_sub_f32 v{zM}, v{zM}, v{zA}')
    a(f'v_mul_f32 v{zM}, {sr(sLOG2E)}, v{zM}')
    a(f'v_exp_f32 v{zM}, v{zM}')
    a(f'v_mul_f32 v{zA+1}, v{zM}, v{zL}')
    a('s_waitcnt lgkmcnt(0)')
    for k in range(4):
        op = 'v_mul_f32_dpp' if k == 0 else 'v_fmac_f32_dpp'
        a(f'{op} v{zO}, v{zM}, v{vG+2*k} quad_perm:[{k},{k},{k},{k}] {DPP}')
        a(f'{op} v{zO+1}, v{zM}, v{vG+2*k+1} quad_perm:[{k},{k},{k},{k}] {DPP}')
        if k == 0: dpp_red('v_add_f32', [zA + 1], Q1)
        if k == 2: dpp_red('v_add_f32', [zA + 1], Q2)
    tag(zO); tag(zO + 1)
    if fine == 1: stamp(13)
    a(f'global_store_dwordx2 v{aE3s}, {vr(zO,2)}, {sr(sAB,2)}')
    tag(zA); tag(zA + 1)
    a(f'v_mov_b32 v{zA+2}, v{zA}')
    a(f'v_mov_b32 v{zA+3}, v{zA+1}')
    a('s_mov_b64 exec, 1')
    a(f'global_store_dwordx4 v{aMLs}, {vr(zA,4)}, {sr(sAB,2)}')
    a('s_mov_b64 exec, -1')
    def st3():
        a(f'global_store_dwordx2 v{aE3s}, {vr(zO,2)}, {WS} sc1')
        a('s_mov_b64 exec, 1')
        a(f'global_store_dwordx4 v{aMLs}, {vr(zA,4)}, {WS} sc1')
        a('s_mov_b64 exec, -1')
    stamp(7)
    a(f'v_add_u32 v{t0}, {4*RS}, v{aE3}')
    a(f'v_add_u32 v{t1}, {8*RS}, v{aE3}')
    a(f'v_add_u32 v{t2}, {12*RS}, v{aE3}')
    if diag and fine == 3:
        a('s_waitcnt vmcnt(0)')
        stamp(8)
    ml = vK
    l3 = [ld4(ml + 4 * k, aML, 4 * MS * k - 6 * MS) for k in range(4)] + [ld4(vG + 4 * k, [aE3, t0, t1, t2][k]) for k in range(4)]
    l3 = [(x.replace(WS, sr(sAB, 2)), r) for x, r in l3]
    poll(l3, alt=True, late_st=st3, cnt_slot=(13 if fine == 4 else None), first_slot=(8 if fine == 4 else None))
    stamp(9)
    a(f'v_max3_f32 v{zM}, v{ml}, v{ml+4}, v{ml+8}')
    a(f'v_max_f32 v{zM}, v{zM}, v{ml+12}')
    swap_red('v_max_f32', [zM], 16, [t1]); swap_red('v_max_f32', [zM], 32, [t1])
    for k in range(4): a(f'v_sub_f32 v{ml+4*k}, v{ml+4*k}, v{zM}')
    for k in range(4): a(f'v_mul_f32 v{ml+4*k}, {sr(sLOG2E)}, v{ml+4*k}')
    for k in range(4): a(f'v_exp_f32 v{ml+4*k}, v{ml+4*k}')
    a(f'v_mul_f32 v{zL}, v{ml}, v{ml+1}')
    sel = 'op_sel:[0,0,0] op_sel_hi:[1,0,1]'
    a(f'v_pk_mul_f32 {vr(vG,2)}, {vr(vG,2)}, {vr(ml,2)} op_sel:[0,0] op_sel_hi:[1,0]')
    a(f'v_pk_mul_f32 {vr(vG+2,2)}, {vr(vG+2,2)}, {vr(ml,2)} op_sel:[0,0] op_sel_hi:[1,0]')
    for k in range(1, 4):
        a(f'v_fmac_f32 v{zL}, v{ml+4*k}, v{ml+4*k+1}')
        a(f'v_pk_fma_f32 {vr(vG,2)}, {vr(vG+4*k,2)}, {vr(ml+4*k,2)}, {vr(vG,2)} {sel}')
        a(f'v_pk_fma_f32 {vr(vG+2,2)}, {vr(vG+4*k+2,2)}, {vr(ml+4*k,2)}, {vr(vG+2,2)} {sel}')
    a(f'v_mov_b32 v{t1}, v{zL}')
    a(f'v_permlane32_swap_b32 v{vG}, v{vG+1}')
    a(f'v_permlane32_swap_b32 v{vG+2}, v{vG+3}')
    a(f'v_permlane16_swap_b32 v{zL}, v{t1}')
    a(f'v_add_f32 v{vG}, v{vG}, v{vG+1}'); a(f'v_add_f32 v{vG+2}, v{vG+2}, v{vG+3}')
    a(f'v_add_f32 v{zL}, v{zL}, v{t1}')
    a(f'v_mov_b32 v{t1}, v{zL}')
    a(f'v_permlane16_swap_b32 v{vG}, v{vG+2}')
    a(f'v_permlane32_swap_b32 v{zL}, v{t1}')
    a(f'v_add_f32 v{vG}, v{vG}, v{vG+2}')
    a(f'v_add_f32 v{zL}, v{zL}, v{t1}')
    a(f'v_rcp_f32 v{zL}, v{zL}')
    a(f'v_mul_f32 v{vG}, v{vG}, v{zL}')
    a(f'v_cvt_pk_bf16_f32 v{vG}, v{vG}, v{vG}')
    a(f'ds_write_b32 v{vXW}, v{vG}')
    a(f'ds_read_b128 {vr(vG+8,4)}, v{vXR}')
    a(f'ds_read_b128 {vr(vG+12,4)}, v{vXR} offset:16')
    a('s_waitcnt lgkmcnt(0)')
    diag_gemv([vWO + 4 * k for k in range(8)], [vG + 8 + k for k in range(8)])
    tile_reduce(L_TR1, aE4)
    stamp(10)
    st3()
    a(f's_cmp_ge_u32 {sS}, 2')
    a('s_cbranch_scc1 L_A_done')
    a(f's_lshl_b32 {FI}, {J}, 1')
    a(f's_add_u32 {FI}, {FI}, {sS}')
    a(f's_lshl_b32 {T0}, {FI}, 7')
    a(f's_mul_i32 {T1}, {W}, {32*RS}')
    a(f's_add_u32 {T0}, {T0}, {T1}')
    a(f's_add_u32 {T0}, {T0}, {E5}')
    a(f'v_mul_u32_u24 v{t0}, {RS}, v{vRHO}')
    a(f'v_lshl_add_u32 v{t0}, v{vC8}, 4, v{t0}')
    a(f'v_add_u32 v{t0}, {T0}, v{t0}')
    for k in range(1, 4): a(f'v_add_u32 v{t[k]}, {8*RS*k}, v{t0}')
    a(f'v_lshl_add_u32 v{t4}, v{vC8}, 2, v{vR}')
    a(f's_lshl_b32 {T1}, {W}, 7')
    a(f'v_lshl_add_u32 v{t4}, v{t4}, 2, {T1}')
    def post5(k):
        if k == 1: pkadd(vG, vG, vG + 4); pkadd(vG + 2, vG + 2, vG + 6)
        if k == 2: pkadd(vG, vG, vG + 8); pkadd(vG + 2, vG + 2, vG + 10)
        if k == 3: pkadd(vG, vG, vG + 12); pkadd(vG + 2, vG + 2, vG + 14)
    poll([ld4(vG + 4 * k, t[k]) for k in range(4)], post5)
    stamp(11)
    tred4([vG])
    dpp_red('v_add_f32', [vG], 'row_ror:8')
    a(f'ds_write_b32 v{t4}, v{vG} offset:{L_FIN}')
    a('s_waitcnt lgkmcnt(0)')
    a('s_barrier')
    stamp(12)
    a.label('L_A_done')
    finish()
    a.label('L_end')
    a('s_endpgm')

    nv = (V.hi + 7) // 8 * 8
    head = [f'; @launch grid=(256,1,1) block=(320,1,1) lds={LDS_BYTES}',
            '.amdgcn_target "amdgcn-amd-amdhsa--gfx950"', '.text', f'.globl {KNAME}', '.p2align 8', f'.type {KNAME},@function']
    tail = [f'.fill ({code_kb}*1024 - (. - {KNAME}))/4, 4, 0xbf810000',
            '.section .rodata,"a"', '.p2align 6', f'.amdhsa_kernel {KNAME}',
            f'  .amdhsa_next_free_vgpr {nv}', '  .amdhsa_next_free_sgpr 100', f'  .amdhsa_accum_offset {nv}',
            '  .amdhsa_group_segment_fixed_size 0', '  .amdhsa_kernarg_size 112', '  .amdhsa_user_sgpr_count 2',
            '  .amdhsa_user_sgpr_kernarg_segment_ptr 1', '  .amdhsa_system_sgpr_workgroup_id_x 1',
            '  .amdhsa_float_denorm_mode_32 3', '.end_amdhsa_kernel']
    return '\n'.join(head) + '\n' + a.text() + '\n'.join(tail) + '\n', nv, a.nnop

if __name__ == '__main__':
    out = sys.argv[1]
    kw = {}
    for x in sys.argv[2:]:
        k, v = x.split('='); kw[k] = int(v)
    kw.setdefault('code_kb', 15 if kw.get('diag') else 13)
    s, nv, nn = gen(**kw)
    open(out, 'w').write(s)
    print('vgprs', nv, 'nops', nn)
```

```python
import sys
sys.path.insert(0, 'gen')
from asmlib import Asm, RegAlloc, vr, sr

KNAME = 'adaLN_cond__sliding_block_cached__glu_gated_bilinear__decode_kernel'
LOG2E = 0x3fb8aa3b
SCALE = 0x3db504f3
EPS = 0x3727c5ac
DPP = 'row_mask:0xf bank_mask:0xf'
Q1, Q2, HM, RM = 'quad_perm:[1,0,3,2]', 'quad_perm:[2,3,0,1]', 'row_half_mirror', 'row_mirror'

E1, E2, E3, E3ML, E8, E7, E4, E6, E5 = 0x1000, 0x10000, 0x20000, 0x64000, 0x78000, 0xB0000, 0xB8000, 0xC2000, 0xC4000
RS, MS = 2176, 640
STAMPS = 0x10000000
LOC = 0xF0000
SPIN = 20000

L_TR1, L_TR2 = 0, 2048
L_XD = 4096
L_Q = 5120
L_ML = 6144
L_FIN = 6272
L_ST = 6784
L_Y = 6912
L_BIG = 8448
LDS_BYTES = L_BIG + 49152

def gen(diag=False, code_kb=12, adelay=0, h1wait=4, pfpol=1, pf=1, exp=0, vsplit=16, local3=0, sep=0, dbg=0, dbl=0, late=0, tdel=0, pfdst=0, dnlast=0, altmask=31, touch=0, nrpol=1, mbe=1, tdel2=0, vst=0, fine=0, athr=0, aw=0, bthr=0, wopf=0, wopol=0, kvmap=0, vph=8, jph=0, aexp=0, wopos=1, ptouch=0, mwg=-1, mslot=0):
    a = Asm()
    PFP = {0: '', 1: ' nt', 2: ' sc0 nt', 3: ' sc1 nt', 4: ' sc0 sc1 nt'}[pfpol]
    NRP = {0: '', 1: ' nt'}[nrpol]
    S = RegAlloc('s', 32, 68)
    V = RegAlloc('v', 1, 256)
    pX, pK, pV, pWQ, pWO, pWG, pWU = 4, 6, 8, 10, 12, 16, 18
    pWD, pC, pWM, pOUT, pWS = 20, 22, 24, 26, 30
    WS = sr(pWS, 2)
    sJ, sY, sW, sT0, sT1, sT2, sT3, sCNT = [S.get() for _ in range(8)]
    sLOG2E, sHI, sFF, sFI = [S.get() for _ in range(4)]
    sUSE = S.get(2); sQ1 = S.get(2); sQ2 = S.get(2); sQ3 = S.get(2); sPC = S.get(2); sM = S.get(2)
    sSC = S.get(2); sAB = S.get(2); sE = S.get()
    T0, T1, T2, T3 = sr(sT0), sr(sT1), sr(sT2), sr(sT3)
    J, Y, W, HI = sr(sJ), sr(sY), sr(sW), sr(sHI)
    sSTAMP = 68
    NST = 15
    def stamp(n):
        if diag: a(f's_memrealtime s[{sSTAMP+2*n}:{sSTAMP+2*n+1}]')
    vL = V.get(); vRHO = V.get(); vC8 = V.get(); vL16 = V.get(); vT = V.get(); vE = V.get()
    vR = V.get(); vG4 = V.get(); vC16 = V.get(); vZ = V.get()
    vM = V.get(4)
    vTRW = V.get(); vXW = V.get(); vXR = V.get()
    vPF = V.get(4); vDUM = V.get()
    t = [V.get() for _ in range(10)]
    t0, t1, t2, t3, t4, t5, t6, t7, t8, t9 = t
    vG = V.get(32)
    vA = V.get(16)
    vD = V.get(4)
    common_mark = V.mark()

    def rb(dst, src):
        a(f'v_cvt_pk_bf16_f32 v{dst}, v{src}, v{src}')
        a(f'v_and_b32 v{dst}, {HI}, v{dst}')
    def rb2(d0, s0, s1, tmp):
        a(f'v_cvt_pk_bf16_f32 v{tmp}, v{s0}, v{s1}')
        a(f'v_lshlrev_b32 v{d0}, 16, v{tmp}')
        a(f'v_and_b32 v{d0+1}, {HI}, v{tmp}')
    def swap_red(op, regs, kind, tmps):
        for r, x in zip(regs, tmps): a(f'v_mov_b32 v{x}, v{r}')
        for r, x in zip(regs, tmps): a(f'v_permlane{kind}_swap_b32 v{r}, v{x}')
        for r, x in zip(regs, tmps): a(f'{op} v{r}, v{r}, v{x}')
    def dpp_red(op, regs, ctl):
        for r in regs: a(f'{op}_dpp v{r}, v{r}, v{r} {ctl} {DPP}')
    def allred(op, regs, tmps):
        for ctl in (Q1, Q2, HM, RM): dpp_red(op, regs, ctl)
        swap_red(op, regs, 16, tmps); swap_red(op, regs, 32, tmps)
    def red63(regs):
        for ctl in (Q1, Q2, HM, RM): dpp_red('v_add_f32', regs, ctl)
        for r in regs: a(f'v_add_f32_dpp v{r}, v{r}, v{r} row_bcast:15 row_mask:0xa bank_mask:0xf')
        for r in regs: a(f'v_add_f32_dpp v{r}, v{r}, v{r} row_bcast:31 row_mask:0xc bank_mask:0xf')
    def tred4(groups):
        for b in groups:
            a(f'v_permlane32_swap_b32 v{b}, v{b+1}'); a(f'v_permlane32_swap_b32 v{b+2}, v{b+3}')
        for b in groups:
            a(f'v_add_f32 v{b}, v{b}, v{b+1}'); a(f'v_add_f32 v{b+2}, v{b+2}, v{b+3}')
        for b in groups: a(f'v_permlane16_swap_b32 v{b}, v{b+2}')
        for b in groups: a(f'v_add_f32 v{b}, v{b}, v{b+2}')
    def pkadd(d, x, y): a(f'v_pk_add_f32 {vr(d,2)}, {vr(x,2)}, {vr(y,2)}')
    pollid = [0]
    deferred = []
    def poll(loads, post=None, alt=False, cnt_slot=None, first_slot=None, late_st=None):
        n = pollid[0]; pollid[0] += 1
        N = len(loads)
        a(f's_mov_b32 {sr(sCNT)}, {SPIN}')
        for txt, regs in loads: a(txt)
        for k, (txt, regs) in enumerate(loads):
            a.label(f'L_chk{n}_{k}')
            a(f's_waitcnt vmcnt({N-1-k})')
            if diag and first_slot is not None and k == 0:
                a(f's_cmp_lg_u32 {sr(sCNT)}, {SPIN}')
                a(f's_cbranch_scc1 L_nf{n}')
                stamp(first_slot)
                a.label(f'L_nf{n}')
            for r in regs: a(f'v_xor_b32 v{r}, v{vT}, v{r}')
            rs = list(regs)
            if len(rs) == 4:
                a(f'v_or3_b32 v{t8}, v{rs[0]}, v{rs[1]}, v{rs[2]}')
                a(f'v_and_or_b32 v{t8}, v{t8}, {sr(sFF)}, 0' if False else f'v_or_b32 v{t8}, v{t8}, v{rs[3]}')
            elif len(rs) == 2:
                a(f'v_or_b32 v{t8}, v{rs[0]}, v{rs[1]}')
            src = t8 if len(rs) > 1 else rs[0]
            a(f'v_cmp_ne_u32_sdwa vcc, v{src}, v{vZ} src0_sel:BYTE_0 src1_sel:DWORD')
            a(f's_cbranch_vccnz L_rty{n}_{k}')
            a.label(f'L_ok{n}_{k}')
            if post: post(k)
        if diag and cnt_slot is not None:
            a('s_waitcnt lgkmcnt(0)')
            a(f's_sub_u32 {T0}, {SPIN}, {sr(sCNT)}')
            a(f's_mul_i32 {T0}, {T0}, 100')
            a(f's_add_u32 s{sSTAMP+2*cnt_slot}, s{sSTAMP}, {T0}')
        def handlers():
            for k in range(N):
                a.label(f'L_rty{n}_{k}')
                a(f's_cmp_eq_u32 {sr(sCNT)}, 0')
                a(f's_cbranch_scc1 L_ok{n}_{k}')
                a(f's_sub_u32 {sr(sCNT)}, {sr(sCNT)}, 1')
                if alt:
                    a(f's_and_b32 {T0}, {sr(sCNT)}, {altmask}')
                    if late_st:
                        a(f's_cbranch_scc1 L_nst{n}_{k}')
                        late_st()
                        a.label(f'L_nst{n}_{k}')
                        a(f's_and_b32 {T0}, {sr(sCNT)}, {altmask}')
                    a(f's_cselect_b32 {T0}, {LOC}, 0')
                    a(f's_add_u32 {sr(sAB)}, {sr(pWS)}, {T0}')
                    a(f's_addc_u32 {sr(sAB+1)}, {sr(pWS+1)}, 0')
                for txt, regs in loads[k:]: a(txt)
                a(f's_branch L_chk{n}_{k}')
        deferred.append(handlers)
    def flush_handlers():
        while deferred: deferred.pop(0)()
    def ld4(r, addr, off=0): return (f'global_load_dwordx4 {vr(r,4)}, v{addr}, {WS} offset:{off} sc1', list(range(r, r + 4)))
    def ld2(r, addr, off=0): return (f'global_load_dwordx2 {vr(r,2)}, v{addr}, {WS} offset:{off} sc1', [r, r + 1])
    def ld1(r, addr, off=0): return (f'global_load_dword v{r}, v{addr}, {WS} offset:{off} sc1', [r])
    def tag(r): a(f'v_bfi_b32 v{r}, {sr(sFF)}, v{vT}, v{r}')
    def diag_gemv(frags, xregs, waits=None):
        n = len(frags)
        def build(k):
            ab = vA + 4 * (k % 4)
            for r in range(4): a(f'v_and_b32 v{ab+r}, v{xregs[k]}, v{vM+r}')
        build(0)
        for k in range(n):
            if k + 1 < n: build(k + 1)
            if waits: a(waits[k])
            a(f'v_mfma_f32_16x16x32_bf16 {vr(vD,4)}, {vr(vA+4*(k%4),4)}, {vr(frags[k],4)}, ' + ('0' if k == 0 else vr(vD, 4)))
    trid = [0]
    def tile_reduce(trbase, vdst_off):
        n = trid[0]; trid[0] += 1
        a(f's_mov_b64 exec, {sr(sUSE,2)}')
        a(f'ds_write_b128 v{vTRW}, {vr(vD,4)} offset:{trbase}')
        a('s_mov_b64 exec, -1')
        a(f's_cmp_lg_u32 {W}, 0')
        a('s_waitcnt lgkmcnt(0)')
        a('s_barrier')
        a(f's_cbranch_scc1 L_trskip{n}')
        for k in range(2): a(f'ds_read_b128 {vr(vG+4*k,4)}, v{vL16} offset:{trbase+1024*k}')
        a('s_waitcnt lgkmcnt(0)')
        pkadd(vG, vG, vG + 4); pkadd(vG + 2, vG + 2, vG + 6)
        tred4([vG])
        tag(vG)
        a(f'global_store_dword v{vdst_off}, v{vG}, {WS} sc1')
        a.label(f'L_trskip{n}')
    def silu_dup(dst, src, tmp):
        a(f'v_mul_f32 v{tmp}, {sr(sLOG2E)}, v{src}')
        a(f'v_exp_f32 v{tmp}, -v{tmp}')
        a(f'v_add_f32 v{tmp}, 1.0, v{tmp}')
        a(f'v_rcp_f32 v{tmp}, v{tmp}')
        a(f'v_mul_f32 v{tmp}, v{src}, v{tmp}')
        a(f'v_cvt_pk_bf16_f32 v{dst}, v{tmp}, v{tmp}')
    fin = [0]
    def finish():
        if mwg >= 0:
            n = fin[0]; fin[0] += 1
            a('s_waitcnt lgkmcnt(0)')
            a(f's_cmp_lg_u32 s2, {mwg}')
            a('s_cbranch_scc1 L_end')
            a(f's_cmp_lg_u32 {W}, 0')
            a('s_cbranch_scc1 L_end')
            a(f's_sub_u32 {T0}, s{sSTAMP+2*mslot}, s{sSTAMP}')
            a(f's_mul_i32 {T0}, {T0}, 10')
            a(f's_add_u32 {T0}, {T0}, 2000')
            a(f's_min_u32 {T0}, {T0}, 30000')
            a.label(f'L_meas{n}')
            a('s_memrealtime s[98:99]')
            a('s_waitcnt lgkmcnt(0)')
            a(f's_sub_u32 {T1}, s98, s{sSTAMP}')
            a(f's_cmp_lt_u32 {T1}, {T0}')
            a(f's_cbranch_scc1 L_meas{n}')
        elif diag and dbg:
            n = fin[0]; fin[0] += 1
            a('s_waitcnt lgkmcnt(0)')
            a(f's_and_b32 {T0}, s2, 0x7f')
            a(f's_or_b32 {T0}, {T0}, {W}')
            a(f's_cmp_lg_u32 {T0}, 0')
            a(f's_cbranch_scc1 L_end')
            a(f's_lshr_b32 {T0}, s2, 7')
            a(f's_xor_b32 {T0}, {T0}, 1')
            a(f's_lshl_b32 {T0}, {T0}, 5')
            a(f'v_mov_b32 v{t0}, {T0}')
            a('s_mov_b64 exec, 1')
            sel = {1: [0, 2, 3, 5, 6, 7, 9, 11], 2: [0, 1, 2, 3, 4, 5, 6, 7]}[dbg]
            selA = {1: [0, 2, 3, 6, 7, 9, 10, 12], 2: [0, 1, 2, 3, 4, 5, 6, 7]}[dbg]
            a(f's_cmp_ge_u32 s2, 128')
            for k in range(8):
                a(f's_cselect_b32 {T1}, s{sSTAMP+2*sel[k]}, s{sSTAMP+2*selA[k]}')
                a(f'v_mov_b32 v{t1}, {T1}')
                a(f'global_store_dword v{t0}, v{t1}, s[28:29] offset:{4*k}')
        elif diag:
            a('s_waitcnt lgkmcnt(0)')
            a(f's_lshl_b32 {T0}, s2, 3')
            a(f's_add_u32 {T0}, {T0}, {W}')
            a(f's_lshl_b32 {T0}, {T0}, 7')
            a(f's_add_u32 {T0}, {T0}, {STAMPS:#x}')
            a(f'v_mov_b32 v{t0}, {T0}')
            a('s_mov_b64 exec, 1')
            for n in range(NST):
                a(f'v_mov_b32 v{t1}, s{sSTAMP+2*n}')
                a(f'global_store_dword v{t0}, v{t1}, {WS} offset:{4*n}')
        a('s_endpgm')
        flush_handlers()
    def helper_stamp(slot):
        if diag:
            a(f's_memrealtime s[{sSTAMP}:{sSTAMP+1}]')
            a(f's_lshl_b32 {T0}, s2, 7')
            a(f's_add_u32 {T0}, {T0}, {STAMPS+4*slot:#x}')
            a(f'v_mov_b32 v{t0}, {T0}')
            a('s_waitcnt lgkmcnt(0)')
            a(f'v_mov_b32 v{t1}, s{sSTAMP}')
            a(f'global_store_dword v{t0}, v{t1}, {WS}')
    def epoch_load():
        if sep == 0: a(f'global_load_dword v{vE}, v{vZ}, {WS} sc1')
        elif sep == 1: a(f's_load_dword {sr(sE)}, {WS}, 0'); a(f'global_load_dword v{vE}, v{vZ}, {sr(pX,2)}')
        elif sep == 2: a(f'global_load_dword v{vE}, v{vZ}, {WS}')
    def epoch_use():
        if sep == 1:
            a('s_waitcnt lgkmcnt(0)')
            a(f'v_mov_b32 v{vE}, {sr(sE)}')
        a(f'v_add_u32 v{vE}, 1, v{vE}')
        a(f'v_and_b32 v{vT}, 0xff, v{vE}')
    def common_consts():
        a(f's_mov_b32 {sr(sLOG2E)}, {LOG2E:#x}')
        a(f's_mov_b32 {HI}, 0xffff0000')
        a(f's_movk_i32 {sr(sFF)}, 0xff')
        a(f's_mov_b32 {sr(sUSE)}, 0x00ff00ff')
        a(f's_mov_b32 {sr(sUSE+1)}, 0xff00ff00')
        a(f'v_and_b32 v{t5}, 1, v{vL}')
        a(f'v_lshlrev_b32 v{t5}, 4, v{t5}')
        a(f'v_mov_b32 v{t6}, 0xffff')
        a(f'v_lshlrev_b32 v{t5}, v{t5}, v{t6}')
        a(f'v_lshrrev_b32 v{t6}, 1, v{vC8}')
        for r in range(4):
            a(f'v_cmp_eq_u32 vcc, {r}, v{t6}')
            a(f'v_cndmask_b32 v{vM+r}, 0, v{t5}, vcc')
        a(f'v_lshrrev_b32 v{t5}, 5, v{vL}')
        a(f'v_bfe_u32 v{t6}, v{vL}, 4, 1')
        a(f'v_lshlrev_b32 v{t5}, 8, v{t5}')
        a(f'v_lshl_add_u32 v{t5}, v{t6}, 4, v{t5}')
        a(f'v_lshl_add_u32 v{t5}, v{vC8}, 5, v{t5}')
        a(f's_lshl_b32 {T3}, {W}, 9')
        a(f'v_add_u32 v{vTRW}, {T3}, v{t5}')
        a(f's_lshl_b32 {T3}, {W}, 8')
        a(f's_add_u32 {T3}, {T3}, {L_XD}')
        a(f'v_lshl_add_u32 v{t5}, v{vC16}, 2, v{vR}')
        a(f'v_lshl_add_u32 v{vXW}, v{t5}, 2, {T3}')
        a(f'v_lshl_add_u32 v{vXR}, v{vRHO}, 5, {T3}')

    a.raw(f'{KNAME}:')
    a('s_load_dwordx16 s[4:19], s[0:1], 0')
    a('s_load_dwordx8 s[20:27], s[0:1], 64')
    a('s_load_dwordx4 s[28:31], s[0:1], 96')
    a(f's_getpc_b64 {sr(sPC,2)}')
    a.label('L_pc')
    a('s_cmp_ge_u32 s2, 256')
    a('s_cbranch_scc1 L_end')
    a(f's_lshr_b32 {Y}, s2, 3')
    a(f'v_lshrrev_b32 v{t0}, 6, v0')
    a(f's_mul_i32 {T0}, {Y}, 5')
    a(f'v_add_u32 v{t1}, {T0}, v{t0}')
    a(f'v_min_u32 v{t1}, {code_kb*8-2}, v{t1}')
    a(f'v_lshlrev_b32 v{t1}, 7, v{t1}')
    a(f'global_load_dword v{vDUM}, v{t1}, {sr(sPC,2)}')
    if diag:
        for n in range(NST): a(f's_mov_b64 s[{sSTAMP+2*n}:{sSTAMP+2*n+1}], 0')
    stamp(0)
    if dbl: a('s_memrealtime s[96:97]')
    a(f'v_and_b32 v{vL}, 63, v0')
    a(f'v_readfirstlane_b32 {W}, v{t0}')
    a(f's_and_b32 {J}, s2, 7')
    a(f'v_lshlrev_b32 v{vL16}, 4, v{vL}')
    a(f'v_lshrrev_b32 v{vRHO}, 3, v{vL}')
    a(f'v_and_b32 v{vC8}, 7, v{vL}')
    a(f'v_lshrrev_b32 v{vG4}, 4, v{vL}')
    a(f'v_and_b32 v{vC16}, 15, v{vL}')
    a(f'v_mov_b32 v{vZ}, 0')
    a(f's_cmp_lt_u32 {Y}, 16')
    a('s_cbranch_scc1 L_A0')
    a(f's_cmp_eq_u32 {W}, 4')
    a('s_cbranch_scc1 ' + ('L_helperB' if ptouch else 'L_end'))

    vK = V.get(64); vV = V.get(64); vS = vA
    vWO = V.get(32)
    a_regs = dict(vKo=V.get(2), vN0=V.get(), vN1=V.get())
    vKo, vN0, vN1 = a_regs['vKo'], a_regs['vN0'], a_regs['vN1']
    aV2 = V.get()
    a_mark = V.mark()
    vQ = vG + 24; vO = vG + 16
    V.reset(common_mark)
    vSd = V.get(4); vB2 = V.get(); vMB = V.get(); vPFA = V.get(); vFD = V.get(16)
    vE4 = V.get(2); vX1 = V.get(); vE6 = V.get(); aDN = V.get(); aTG = V.get(); aTD = V.get()
    vStG = V.get(); vStD = V.get(); aYW = V.get(); aYR = V.get(); vE5 = V.get(); vSTR = V.get(); vSTW = V.get()
    aE8s = V.get(); aE8l = V.get(); vC0 = V.get(); vC1 = V.get(); vC2 = V.get()
    keep_mark = V.mark()
    vCs = V.get(); vMT = V.get(8); vX = V.get(4); vXd = V.get(); vWQ = V.get(32)
    vB0 = V.get(); vB1 = V.get(); vH = V.get(8)
    I = Y
    a(f's_sub_u32 {I}, {Y}, 16')
    a(f's_lshl_b32 {T0}, {J}, 6')
    a(f's_lshl_b32 {T1}, {W}, 4')
    a(f's_add_u32 {T0}, {T0}, {T1}')
    a(f'v_lshl_add_u32 v{t0}, v{vRHO}, 1, {T0}')
    a(f'v_lshlrev_b32 v{t1}, 1, v{t0}')
    a(f'v_mul_u32_u24 v{t0}, 6144, v{t0}')
    a(f's_lshl_b32 {T2}, {I}, 7')
    a(f'v_lshl_add_u32 v{t0}, v{vC8}, 4, v{t0}')
    a(f'v_add_u32 v{t0}, {T2}, v{t0}')
    a(f'v_add_u32 v{t5}, 6144, v{t0}')
    a('s_waitcnt lgkmcnt(0)')
    stamp(1)
    a(f'global_load_dword v{vCs}, v{t1}, {sr(pC,2)}')
    a(f'global_load_dwordx4 {vr(vMT,4)}, v{t0}, {sr(pWM,2)} nt')
    a(f'global_load_dwordx4 {vr(vMT+4,4)}, v{t5}, {sr(pWM,2)} nt')
    epoch_load()
    a(f'v_bfe_u32 v{t3}, v{vL}, 4, 1')
    a(f'v_lshrrev_b32 v{t4}, 5, v{vL}')
    a(f'v_lshl_add_u32 v{vR}, v{t3}, 1, v{t4}')
    a(f's_and_b32 {T0}, {I}, 1')
    a(f's_lshl_b32 {T0}, {T0}, 8')
    a(f's_lshl_b32 {T1}, {W}, 6')
    a(f's_add_u32 {T0}, {T0}, {T1}')
    a(f'v_lshl_add_u32 v{t3}, v{vC16}, 2, v{vR}')
    a(f'v_add_lshl_u32 v{t3}, v{t3}, {T0}, 1')
    a(f'v_lshl_add_u32 v{t4}, v{vRHO}, 3, {T0}')
    a(f'v_lshlrev_b32 v{t4}, 13, v{t4}')
    a(f's_lshl_b32 {T1}, {J}, 10')
    a(f's_lshr_b32 {T2}, {I}, 1')
    a(f's_lshl_b32 {T2}, {T2}, 7')
    a(f's_add_u32 {T1}, {T1}, {T2}')
    a(f'v_lshl_add_u32 v{t4}, v{vC8}, 4, v{t4}')
    a(f'v_add_u32 v{t4}, {T1}, v{t4}')
    a(f'v_mov_b32 v{vXd}, 0')
    a(f's_and_b32 {T0}, {I}, 3')
    a(f's_lshl_b32 {T0}, {T0}, 7')
    a(f's_lshl_b32 {T1}, {W}, 5')
    a(f's_add_u32 {T0}, {T0}, {T1}')
    a(f'v_lshl_add_u32 v{vMB}, v{vRHO}, 2, {T0}')
    a(f'v_lshlrev_b32 v{t6}, 1, v{vMB}')
    a(f'v_lshl_add_u32 v{t7}, v{vC8}, 2, v{vR}')
    a(f'v_add_lshl_u32 v{t7}, v{t7}, {T0}, 1')
    a(f'v_mov_b32 v{vX1}, 0')
    a('s_barrier')
    a(f'global_load_dwordx4 {vr(vX,4)}, v{vL16}, {sr(pX,2)}')
    a(f'global_load_short_d16_hi v{vXd}, v{t3}, {sr(pX,2)}')
    a(f'global_load_dwordx2 {vr(vSd+2,2)}, v{t6}, {sr(pC,2)}')
    a(f'global_load_short_d16_hi v{vX1}, v{t7}, {sr(pX,2)}')
    for k in range(8):
        a(f'global_load_dwordx4 {vr(vWQ+4*k,4)}, v{t4}, {sr(pWQ,2)} nt')
        if k < 7: a(f'v_add_u32 v{t4}, 8192, v{t4}')
    a(f's_lshl_b32 {T0}, {J}, 4')
    a(f's_add_u32 {T0}, {T0}, {I}')
    a(f's_lshr_b32 {T1}, {T0}, 2')
    a(f's_lshl_b32 {T1}, {T1}, 7')
    a(f's_add_u32 {T1}, {T1}, 2048')
    a(f'v_mul_u32_u24 v{vMB}, 6144, v{vMB}')
    a(f'v_lshl_add_u32 v{vMB}, v{vC8}, 4, v{vMB}')
    a(f'v_add_u32 v{vMB}, {T1}, v{vMB}')
    common_consts()
    a(f'v_lshl_add_u32 v{t6}, v{vC16}, 2, v{vR}')
    a(f's_lshl_b32 {T0}, {I}, 3')
    a(f's_add_u32 {T0}, {T0}, {J}')
    a(f's_lshl_b32 {T0}, {T0}, 8')
    a(f's_add_u32 {T0}, {T0}, {E1}')
    a(f'v_lshl_add_u32 v{vB0}, v{t6}, 2, {T0}')
    a('s_waitcnt vmcnt(15)')
    a(f'v_lshlrev_b32 v{t3}, 16, v{vCs}')
    a(f'v_and_b32 v{t4}, {HI}, v{vCs}')
    silu_dup(t0, t3, t5); silu_dup(t1, t4, t6)
    diag_gemv([vMT, vMT + 4], [t0, t1], ['s_waitcnt vmcnt(14)', 's_waitcnt vmcnt(12)'])
    stamp(2)
    epoch_use()
    tile_reduce(L_TR1, vB0)
    stamp(3)
    def modb_loads():
        for k in range(4):
            a(f'global_load_dwordx4 {vr(vFD+4*k,4)}, v{vMB}, {sr(pWM,2)} nt')
            if k < 3: a(f'v_add_u32 v{vMB}, 6144, v{vMB}')
    if mbe:
        a('s_barrier')
        modb_loads()
    a(f's_waitcnt vmcnt({12 if mbe else 8})')
    xs = vG
    for k in range(4):
        a(f'v_lshlrev_b32 v{xs+2*k}, 16, v{vX+k}')
        a(f'v_and_b32 v{xs+2*k+1}, {HI}, v{vX+k}')
    pkadd(xs + 8, xs, xs + 2); pkadd(xs + 10, xs + 4, xs + 6); pkadd(xs + 8, xs + 8, xs + 10)
    a(f'v_add_f32 v{t0}, v{xs+8}, v{xs+9}')
    allred('v_add_f32', [t0], [t1])
    a(f'v_mul_f32 v{t0}, 0x3b000000, v{t0}')
    for k in range(8): a(f'v_sub_f32 v{xs+k}, v{xs+k}, v{t0}')
    a(f'v_mul_f32 v{t2}, v{xs}, v{xs}')
    for k in range(1, 8): a(f'v_fmac_f32 v{t2}, v{xs+k}, v{xs+k}')
    allred('v_add_f32', [t2], [t1])
    a(f'v_mul_f32 v{t2}, 0x3b000000, v{t2}')
    vN = vXd
    rb(t2, t2); rb(t0, t0)
    a(f'v_add_f32 v{t2}, {EPS:#x}, v{t2}')
    a(f'v_sub_f32 v{t3}, v{vXd}, v{t0}')
    rb(t2, t2); rb(t3, t3)
    a(f'v_sqrt_f32 v{t2}, v{t2}')
    rb(t2, t2)
    a(f'v_rcp_f32 v{t4}, v{t2}')
    a(f'v_mul_f32 v{t5}, v{t3}, v{t4}')
    a(f'v_fma_f32 v{t3}, -v{t5}, v{t2}, v{t3}')
    a(f'v_fma_f32 v{t5}, v{t3}, v{t4}, v{t5}')
    rb(vN, t5)
    a(f's_and_b32 {T0}, {I}, 1')
    a(f's_lshl_b32 {T0}, {T0}, 2')
    a(f's_add_u32 {T0}, {T0}, {W}')
    a(f's_lshl_b32 {T0}, {T0}, 11')
    a(f's_add_u32 {T0}, {T0}, {E1}')
    a(f'v_add_u32 v{vH}, {T0}, v{vL16}')
    a(f'v_add_u32 v{vH+1}, {8*2048}, v{vH}')
    a(f'v_and_b32 v{t0}, 1, v{vL}')
    a(f'v_bfe_u32 v{t1}, v{vL}, 1, 3')
    a(f'v_lshlrev_b32 v{t0}, 5, v{t0}')
    a(f'v_lshl_add_u32 v{t0}, v{t1}, 2, v{t0}')
    a(f'v_add_u32 v{t0}, v{t0}, v{vR}')
    a(f's_lshl_b32 {T0}, {J}, 4')
    a(f's_add_u32 {T0}, {T0}, {I}')
    a(f's_lshl_b32 {T0}, {T0}, 8')
    a(f's_add_u32 {T0}, {T0}, {E2}')
    a(f'v_lshl_add_u32 v{vB1}, v{t0}, 2, {T0}')
    FI = sr(sFI)
    stamp(4)
    a(f's_waitcnt vmcnt({h1wait})')
    if fine == 2: stamp(12)
    vW = V.get(48); vDd = vW
    V.reset(keep_mark)
    vFG = V.get(16); vFU = V.get(16)
    vDg = V.get(4); vDu = V.get(4); vGA = V.get(); vSB = V.get(); vCB = V.get(); vMO = V.get(2)
    def late_loads(tag_):
        if tag_:
            a(f's_cmp_lg_u32 {sr(sM)}, 0')
            a(f's_cbranch_scc1 L_nolate{tag_}')
        for k in range(4):
            if bthr and k == 2: a(f's_waitcnt vmcnt({bthr-1})')
            a(f'global_load_dwordx4 {vr(vW+4*k,4)}, v{vPFA}, {sr(pWG,2)} nt')
            a(f'global_load_dwordx4 {vr(vW+16+4*k,4)}, v{vPFA}, {sr(pWU,2)} nt')
            if k < 3: a(f'v_add_u32 v{vPFA}, {8*3584}, v{vPFA}')
        if bthr: a(f's_waitcnt vmcnt({bthr-1})')
        for k in range(4):
            a(f'global_load_dwordx4 {vr(vW+32+4*k,4)}, v{aDN}, {sr(pWD,2)} nt')
            if k < 3: a(f'v_add_u32 v{aDN}, 4096, v{aDN}')
        a(f'global_load_dword v{vDUM}, v{aE8l}, {sr(sAB,2)}')
        a(f'global_load_dword v{vDUM}, v{aE8l}, {sr(sAB,2)} offset:256')
        if tag_:
            a(f's_branch L_lated{tag_}')
            a.label(f'L_nolate{tag_}')
            a('s_waitcnt vmcnt(0)')
            a.label(f'L_lated{tag_}')
    def post1(k):
        if k == 1: pkadd(vG, vG, vG + 4); pkadd(vG + 2, vG + 2, vG + 6)
        if k == 3: pkadd(vG + 8, vG + 8, vG + 12); pkadd(vG + 10, vG + 10, vG + 14)
    poll([ld4(vG, vH), ld4(vG + 4, vH, 1024), ld4(vG + 8, vH + 1), ld4(vG + 12, vH + 1, 1024)], post1, cnt_slot=(13 if fine == 2 else None), first_slot=(14 if fine == 2 else None))
    stamp(5)
    tred4([vG, vG + 8])
    rb2(t0, vG, vG + 8, t2)
    a(f'v_add_f32 v{t1}, 1.0, v{t1}')
    rb(t1, t1)
    a(f'v_mul_f32 v{t1}, v{vN}, v{t1}')
    rb(t1, t1)
    a(f'v_add_f32 v{t1}, v{t1}, v{t0}')
    a(f'v_cvt_pk_bf16_f32 v{t1}, v{t1}, v{t1}')
    a(f'ds_write_b32 v{vXW}, v{t1}')
    a(f'ds_read_b128 {vr(vH,4)}, v{vXR}')
    a(f'ds_read_b128 {vr(vH+4,4)}, v{vXR} offset:16')
    a('s_waitcnt lgkmcnt(0)')
    diag_gemv([vWQ + 4 * k for k in range(8)], [vH + k for k in range(8)])
    tile_reduce(L_TR2, vB1)
    a('s_barrier')
    stamp(6)
    if tdel2:
        a.label('L_tdel2')
        a('s_memrealtime s[98:99]')
        a('s_waitcnt lgkmcnt(0)')
        a(f's_sub_u32 {T1}, s98, s{sSTAMP}')
        a(f's_cmp_lt_u32 {T1}, {tdel2}')
        a('s_cbranch_scc1 L_tdel2')
    def wo_prefetch():
        a(f's_lshl_b32 {T0}, {J}, 9')
        a(f's_and_b32 {T1}, {I}, 1')
        a(f's_lshl_b32 {T1}, {T1}, 8')
        a(f's_add_u32 {T0}, {T0}, {T1}')
        a(f's_lshl_b32 {T1}, {W}, 6')
        a(f's_add_u32 {T0}, {T0}, {T1}')
        a(f's_lshl_b32 {T0}, {T0}, 10')
        a(f's_lshr_b32 {T1}, {I}, 1')
        a(f's_lshl_b32 {T1}, {T1}, 7')
        a(f's_add_u32 {T0}, {T0}, {T1}')
        a(f'v_lshlrev_b32 v{t0}, 10, v{vRHO}')
        a(f'v_lshl_add_u32 v{t0}, v{vC8}, 4, v{t0}')
        a(f'v_add_u32 v{t0}, {T0}, v{t0}')
        for k in range(8):
            a(f'global_load_dwordx4 {vr(vPF,4)}, v{t0}, {sr(pWO,2)}' + (' nt' if wopol else ''))
            if k < 7: a(f'v_add_u32 v{t0}, 8192, v{t0}')
    if wopf == 1: wo_prefetch()
    if not mbe: modb_loads()
    if wopf == 2: wo_prefetch()
    a(f's_lshl_b32 {T0}, {J}, 2')
    a(f's_mul_i32 {T1}, {J}, 3')
    a(f's_add_u32 {T1}, {T1}, 4')
    a(f's_cmp_ge_u32 {J}, 4')
    a(f's_cselect_b32 {T0}, {T1}, {T0}')
    a(f's_cselect_b32 {T2}, 12, 16')
    a(f's_lshl_b32 {T0}, {T0}, 2')
    a(f's_add_u32 {FI}, {T0}, {I}')
    a(f's_cmp_ge_u32 {I}, {T2}')
    a(f's_cselect_b32 {sr(sM)}, 1, 0')
    a(f's_and_b32 {T0}, {FI}, 3')
    a(f's_lshl_b32 {T0}, {T0}, 7')
    a(f's_lshl_b32 {T1}, {W}, 5')
    a(f's_add_u32 {T0}, {T0}, {T1}')
    a(f'v_add_u32 v{vPFA}, {T0}, v{vRHO}')
    a(f'v_mul_u32_u24 v{vPFA}, 3584, v{vPFA}')
    a(f's_lshr_b32 {T1}, {FI}, 2')
    a(f's_lshl_b32 {T1}, {T1}, 7')
    a(f'v_lshl_add_u32 v{vPFA}, v{vC8}, 4, v{vPFA}')
    a(f'v_add_u32 v{vPFA}, {T1}, v{vPFA}')
    a(f's_lshl_b32 {T1}, {FI}, 14')
    a(f's_lshl_b32 {T2}, {W}, 8')
    a(f's_add_u32 {T1}, {T1}, {T2}')
    a(f'v_lshlrev_b32 v{t2}, 10, v{vG4}')
    a(f'v_lshl_add_u32 v{t2}, v{vC16}, 4, v{t2}')
    a(f'v_add_u32 v{aDN}, {T1}, v{t2}')
    a(f's_lshl_b32 {T1}, {FI}, 11')
    a(f's_add_u32 {T1}, {T1}, {E8}')
    a(f'v_lshlrev_b32 v{t1}, 9, v{vG4}')
    a(f'v_lshl_add_u32 v{t1}, v{vC16}, 4, v{t1}')
    a(f'v_add_u32 v{aE8l}, {T1}, v{t1}')
    a(f's_add_u32 {sr(sAB)}, {sr(pWS)}, {LOC}')
    a(f's_addc_u32 {sr(sAB+1)}, {sr(pWS+1)}, 0')
    if late == 1: late_loads('b')
    a(f'v_lshlrev_b32 v{t0}, 16, v{vSd+2}')
    a(f'v_and_b32 v{t1}, {HI}, v{vSd+2}')
    a(f'v_lshlrev_b32 v{t2}, 16, v{vSd+3}')
    a(f'v_and_b32 v{t3}, {HI}, v{vSd+3}')
    for k in range(4): silu_dup(vSd + k, t[k], t5)
    a(f's_lshl_b32 {T0}, {J}, 4')
    a(f's_add_u32 {T0}, {T0}, {I}')
    a(f's_lshl_b32 {T0}, {T0}, 8')
    a(f's_add_u32 {T0}, {T0}, {E7}')
    a(f'v_lshl_add_u32 v{t6}, v{vC16}, 2, v{vR}')
    a(f'v_lshl_add_u32 v{vB2}, v{t6}, 2, {T0}')
    if not mbe: a('s_waitcnt vmcnt(14)' if late == 1 else ('s_waitcnt vmcnt(8)' if wopf == 2 else 's_waitcnt vmcnt(0)'))
    diag_gemv([vFD + 4 * k for k in range(4)], [vSd + k for k in range(4)])
    tile_reduce(L_TR1, vB2)
    a(f's_cmp_lg_u32 {sr(sM)}, 0')
    a('s_barrier')
    a('s_cbranch_scc1 L_COMB')
    stamp(1)
    if tdel:
        a.label('L_tdel')
        a('s_memrealtime s[98:99]')
        a('s_waitcnt lgkmcnt(0)')
        a(f's_sub_u32 {T1}, s98, s{sSTAMP}')
        a(f's_cmp_lt_u32 {T1}, {tdel}')
        a('s_cbranch_scc1 L_tdel')
    if late == 2: late_loads(None)
    a(f's_lshl_b32 {T3}, {W}, 5')
    a(f'v_lshl_add_u32 v{t5}, v{vC8}, 2, v{vR}')
    a(f'v_add_u32 v{t5}, {T3}, v{t5}')
    a(f'v_lshl_add_u32 v{aYW}, v{t5}, 1, {L_Y}' if False else f'v_lshlrev_b32 v{aYW}, 1, v{t5}')
    a(f's_and_b32 {T0}, {FI}, 3')
    a(f's_lshl_b32 {T1}, {T0}, 9')
    a(f's_add_u32 {T1}, {T1}, {E6+2048}')
    a(f'v_lshl_add_u32 v{vE6}, v{t5}, 2, {T1}')
    a(f's_lshl_b32 {T1}, {T0}, 9')
    a(f's_lshl_b32 {T3}, {W}, 7')
    a(f's_add_u32 {T1}, {T1}, {T3}')
    a(f's_add_u32 {T1}, {T1}, {E4}')
    a(f'v_mul_u32_u24 v{t0}, {RS}, v{vRHO}')
    a(f'v_lshl_add_u32 v{t0}, v{vC8}, 4, v{t0}')
    a(f'v_add_u32 v{vE4}, {T1}, v{t0}')
    a(f'v_add_u32 v{vE4+1}, {8*RS}, v{vE4}')
    a(f'v_and_b32 v{t0}, 3, v{vL}')
    a(f'v_lshlrev_b32 v{vSTR}, 3, v{t0}')
    a(f'v_lshlrev_b32 v{t1}, 8, v{t0}')
    a(f'v_lshl_add_u32 v{aYR}, v{vG4}, 4, v{t1}')
    a(f's_lshl_b32 {T3}, {W}, 3')
    a(f'v_mov_b32 v{vSTW}, {T3}')
    a(f's_andn2_b32 {T1}, {FI}, 3')
    a(f's_add_u32 {T1}, {T1}, {W}')
    a(f's_lshl_b32 {T1}, {T1}, 2')
    a(f's_add_u32 {T1}, {T1}, {T0}')
    a(f's_lshl_b32 {T1}, {T1}, 9')
    a(f's_add_u32 {T1}, {T1}, {E8}')
    a(f'v_lshl_add_u32 v{aE8s}, v{vL}, 2, {T1}')
    a(f's_lshl_b32 {T2}, {W}, 9')
    a(f's_mul_i32 {T3}, {FI}, {RS}')
    a(f's_add_u32 {T3}, {T3}, {T2}')
    a(f's_add_u32 {T3}, {T3}, {E5}')
    a(f'v_lshl_add_u32 v{vE5}, v{vL}, 2, {T3}')
    a(f's_lshl_b32 {T2}, {W}, 12')
    a(f'v_add_u32 v{vStG}, {T2}, v{vL16}')
    a(f'v_bfe_u32 v{t1}, v{vL}, 2, 2')
    a(f'v_lshlrev_b32 v{t1}, 7, v{t1}')
    a(f'v_lshl_add_u32 v{t1}, v{vG4}, 10, v{t1}')
    a(f'v_lshl_add_u32 v{t1}, v{t0}, 3, v{t1}')
    a(f's_lshl_b32 {T3}, {W}, 5')
    a(f'v_add_u32 v{aTG}, {T3}, v{t1}')
    a(f'v_bfe_u32 v{t1}, v{vL}, 2, 2')
    a(f'v_lshl_add_u32 v{t1}, v{t1}, 2, v{vR}')
    a(f'v_lshlrev_b32 v{t1}, 8, v{t1}')
    a(f'v_lshl_add_u32 v{t1}, v{t0}, 3, v{t1}')
    a(f'v_add_u32 v{aTD}, {T2}, v{t1}')
    a(f'v_bfe_u32 v{t1}, v{vL}, 2, 2')
    for k, r in enumerate((vC0, vC1, vC2)):
        a(f'v_cmp_eq_u32 vcc, {k}, v{t1}')
        a(f'v_cndmask_b32 v{r}, 0, 1.0, vcc')
    a(f's_mov_b32 {sr(sQ1)}, 0xffff0000')
    a(f's_mov_b32 {sr(sQ1+1)}, 0')
    a(f's_mov_b32 {sr(sQ2)}, 0')
    a(f's_mov_b32 {sr(sQ2+1)}, 0x0000ffff')
    a(f's_mov_b32 {sr(sQ3)}, 0')
    a(f's_mov_b32 {sr(sQ3+1)}, 0xffff0000')
    a(f's_mov_b32 {sr(sSC)}, 0xf000f000')
    a(f's_mov_b32 {sr(sSC+1)}, 0xf000f000')
    a(f's_mov_b32 {sr(sM)}, 0')
    a(f's_mov_b32 {sr(sM+1)}, 0x80000000')
    order = []
    for k in range(4): order += [(vW + 4 * k, L_BIG + 1024 * k), (vW + 16 + 4 * k, L_BIG + 16384 + 1024 * k)]
    order += [(vW + 32 + 4 * k, L_BIG + 32768 + 1024 * k) for k in range(4)]
    for k, (r, off) in enumerate(order):
        a(f's_waitcnt vmcnt({13-k})')
        a(f'ds_write_b128 v{vStG}, {vr(r,4)} offset:{off}')
    for tau in range(8):
        a(f'ds_read_b64_tr_b16 {vr(vFD+2*tau,2)}, v{aTD} offset:{L_BIG+32768+32*tau}')
    a('s_waitcnt lgkmcnt(0)')
    a('s_barrier')
    for m, base in ((0, vFG), (1, vFU)):
        for sg in range(4):
            for aa in range(2):
                a(f'ds_read_b64_tr_b16 {vr(base+4*sg+2*aa,2)}, v{aTG} offset:{L_BIG+16384*m+4096*sg+512*aa}')
    stamp(7)
    if exp: a('s_branch L_A_done')
    def post4(k):
        if k == 2:
            a(f'v_add_f32 v{vCB}, 1.0, v{vCB}')
            rb(vCB, vCB)
            a(f'ds_write_b16_d16_hi v{aYW}, v{vCB} offset:{L_Y+512}')
            a(f'ds_write_b16_d16_hi v{aYW}, v{vSB} offset:{L_Y+768}')
            stamp(8)
        if k == 4: pkadd(vG, vG, vG + 4); pkadd(vG + 2, vG + 2, vG + 6)
    poll([ld1(vGA, vE6, -2048), ld1(vSB, vE6), ld1(vCB, vE6, 2048), ld4(vG, vE4), ld4(vG + 4, vE4 + 1)], post4)
    stamp(9)
    tred4([vG])
    dpp_red('v_add_f32', [vG], 'row_ror:8')
    rb(vG, vG)
    a(f'v_mul_f32 v{vG}, v{vGA}, v{vG}')
    rb(vG, vG)
    a(f'v_add_f32 v{vG}, v{vX1}, v{vG}')
    rb(vX1, vG)
    a(f'v_mul_f32 v{t2}, v{vX1}, v{vCB}')
    a(f'v_readfirstlane_b32 {T0}, v{vX1}')
    a(f'v_cvt_pk_bf16_f32 v{t3}, v{t2}, v{t2}')
    a(f'v_and_b32 v{t4}, {HI}, v{t3}')
    a(f'v_subrev_f32 v{t0}, {T0}, v{vX1}')
    a(f'v_sub_f32 v{t2}, v{t2}, v{t4}')
    a(f'v_mul_f32 v{t1}, v{t0}, v{t0}')
    a(f'ds_write_b16 v{aYW}, v{t3} offset:{L_Y}')
    a(f'ds_write_b16_d16_hi v{aYW}, v{t2} offset:{L_Y+256}')
    red63([t0, t1])
    a(f'v_mul_f32 v{t2}, 0x3c800000, v{t0}')
    a(f'v_add_f32 v{vG}, {T0}, v{t2}')
    a(f'v_fma_f32 v{vG+1}, -v{t2}, v{t0}, v{t1}')
    a(f's_mov_b64 exec, {sr(sM,2)}')
    a(f'ds_write_b64 v{vSTW}, {vr(vG,2)} offset:{L_ST}')
    a('s_mov_b64 exec, -1')
    a('s_waitcnt lgkmcnt(0)')
    if fine != 2: stamp(13)
    a('s_barrier')
    if fine != 2: stamp(14)
    a(f'ds_read_b64 {vr(vG,2)}, v{vSTR} offset:{L_ST}')
    for sg in range(4): a(f'ds_read_b128 {vr(vA+4*sg,4)}, v{aYR} offset:{L_Y+64*sg}')
    def mm(sg):
        a(f's_waitcnt lgkmcnt({3-sg})')
        a(f'v_mfma_f32_16x16x32_bf16 {vr(vDg,4)}, {vr(vA+4*sg,4)}, {vr(vFG+4*sg,4)}, ' + ('0' if sg == 0 else vr(vDg, 4)))
        a(f'v_mfma_f32_16x16x32_bf16 {vr(vDu,4)}, {vr(vA+4*sg,4)}, {vr(vFU+4*sg,4)}, ' + ('0' if sg == 0 else vr(vDu, 4)))
    mm(0)
    a(f'v_add_f32_dpp v{t0}, v{vG}, v{vG} {Q1} {DPP}')
    mm(1)
    dpp_red('v_add_f32', [t0], Q2)
    a(f'v_mul_f32 v{vMO}, 0x3e800000, v{t0}')
    mm(2)
    a(f'v_sub_f32 v{t1}, v{vG}, v{vMO}')
    a(f'v_mul_f32 v{t2}, 0x42800000, v{t1}')
    a(f'v_fmac_f32 v{vG+1}, v{t1}, v{t2}')
    mm(3)
    dpp_red('v_add_f32', [vG + 1], Q1)
    a(f'v_and_b32 v{t3}, 1, v{vL}')
    a(f'v_cmp_eq_u32 vcc, 1, v{t3}')
    dpp_red('v_add_f32', [vG + 1], Q2)
    a(f'v_mul_f32 v{vMO+1}, 0.5, v{vG+1}')
    a(f'v_cndmask_b32 v{t3}, v{vMO}, v{vMO+1}, vcc')
    for d, tt in ((vDg, vDg + 1), (vDu, vDu + 1)):
        a(f'v_add_f32 v{d}, v{d}, v{d+1}')
        a(f'v_cndmask_b32 v{tt}, v{d}, v{d+2}, {sr(sQ1,2)}')
        a(f'v_cndmask_b32 v{tt}, v{tt}, v{d+3}, {sr(sQ2,2)}')
        a(f'v_cndmask_b32 v{tt}, v{tt}, v{t3}, {sr(sQ3,2)}')
        tag(tt)
        a(f'global_store_dword v{aE8s}, v{tt}, {sr(sAB,2)} offset:{0 if d == vDg else 256}')
    def st8():
        a(f'global_store_dword v{aE8s}, v{vDg+1}, {WS} sc1')
        a(f'global_store_dword v{aE8s}, v{vDu+1}, {WS} offset:256 sc1')
    stamp(10)
    l8 = [(x.replace(WS, sr(sAB, 2)), r) for x, r in [ld4(vG, aE8l), ld4(vG + 4, aE8l, 256)]]
    def post8(k):
        if k == 0:
            a(f's_mov_b64 exec, {sr(sSC,2)}')
            a(f'v_sub_f32 v{vG}, v{vG}, v{vMO}')
            a(f'v_mul_f32 v{t0}, 0x43000000, v{vG}')
            a(f'v_fmac_f32 v{vG+1}, v{t0}, v{vG}')
            a('s_mov_b64 exec, -1')
    poll(l8, post8, alt=True, late_st=st8)
    if fine != 2: stamp(12)
    tred4([vG, vG + 4])
    a(f'v_readlane_b32 {T0}, v{vG}, 12')
    a(f'v_readlane_b32 {T1}, v{vG}, 44')
    a(f'v_mul_f32 v{t0}, 0x3e800000, {T0}' if False else f'v_mov_b32 v{t0}, {T0}')
    a(f'v_mul_f32 v{t1}, 0xc2000000, v{t0}')
    a(f'v_fma_f32 v{t2}, v{t1}, v{t0}, {T1}')
    a(f'v_mul_f32 v{t2}, 0x3b000000, v{t2}')
    a(f'v_fmac_f32 v{vMO}, 0x3e800000, v{t0}')
    rb(t2, t2)
    a(f'v_add_f32 v{t2}, {EPS:#x}, v{t2}')
    rb(t2, t2)
    a(f'v_sqrt_f32 v{t2}, v{t2}')
    rb(vMO, vMO)
    rb(t2, t2)
    a(f'v_rcp_f32 v{t2}, v{t2}')
    a(f'v_fma_f32 v{t3}, -v{vMO}, v{vC1}, v{vC0}')
    a(f'v_fma_f32 v{t3}, v{t3}, v{t2}, v{vC2}')
    a(f'v_mul_f32 v{vG}, v{vG}, v{t3}')
    a(f'v_mul_f32 v{vG+4}, v{vG+4}, v{t3}')
    dpp_red('v_add_f32', [vG, vG + 4], 'row_ror:4')
    dpp_red('v_add_f32', [vG, vG + 4], 'row_ror:8')
    rb2(t0, vG, vG + 4, t2)
    a(f'v_mul_f32 v{t0}, v{t0}, v{t1}')
    for k in range(4): a(f'v_mov_b32_dpp v{vG+k}, v{t0} quad_perm:[{k},{k},{k},{k}] {DPP}')
    a(f'v_cvt_pk_bf16_f32 v{vA}, v{vG}, v{vG+1}')
    a(f'v_cvt_pk_bf16_f32 v{vA+1}, v{vG+2}, v{vG+3}')
    for tau in range(8):
        a(f'v_mfma_f32_16x16x16_bf16 {vr(vDd+4*tau,4)}, {vr(vA,2)}, {vr(vFD+2*tau,2)}, 0')
    for hlf, tt in ((0, t0), (1, t1)):
        b = vDd + 16 * hlf
        a(f'v_cndmask_b32 v{tt}, v{b}, v{b+4}, {sr(sQ1,2)}')
        a(f'v_cndmask_b32 v{tt}, v{tt}, v{b+8}, {sr(sQ2,2)}')
        a(f'v_cndmask_b32 v{tt}, v{tt}, v{b+12}, {sr(sQ3,2)}')
        tag(tt)
        a(f'global_store_dword v{vE5}, v{tt}, {WS} offset:{256*hlf} sc1')
    stamp(11)
    st8()
    finish()

    a.label('L_COMB')
    a(f's_lshl_b32 {T0}, {J}, 2')
    a(f's_add_u32 {FI}, {T0}, {I}')
    a(f's_sub_u32 {FI}, {FI}, 28')
    a(f's_add_u32 {T1}, {FI}, 112')
    a(f's_mul_i32 {T1}, {T1}, {RS}')
    a(f's_lshl_b32 {T2}, {W}, 9')
    a(f's_add_u32 {T1}, {T1}, {T2}')
    a(f's_add_u32 {T1}, {T1}, {E5}')
    a(f'v_lshl_add_u32 v{t3}, v{vL}, 2, {T1}')
    a(f'global_store_dword v{t3}, v{vT}, {WS} sc1')
    a(f'global_store_dword v{t3}, v{vT}, {WS} offset:256 sc1')
    a(f's_cmp_ge_u32 {W}, 2')
    a('s_cbranch_scc1 L_comb_done')
    a(f's_lshl_b32 {T0}, {FI}, 1')
    a(f's_add_u32 {T0}, {T0}, {W}')
    a(f's_lshl_b32 {T1}, {T0}, 10')
    a(f's_add_u32 {T1}, {T1}, {E7}')
    a(f'v_add_u32 v{t0}, {T1}, v{vL16}')
    a(f's_lshl_b32 {T1}, {T0}, 8')
    a(f's_add_u32 {T1}, {T1}, {E6}')
    a(f'v_lshl_add_u32 v{t1}, v{vC16}, 2, v{vR}')
    a(f'v_lshl_add_u32 v{t1}, v{t1}, 2, {T1}')
    stamp(7)
    poll([ld4(vG, t0)])
    tred4([vG])
    rb(vG, vG)
    a(f'v_or_b32 v{vG}, v{vG}, v{vT}')
    a(f'global_store_dword v{t1}, v{vG}, {WS} sc1')
    stamp(8)
    a.label('L_comb_done')
    finish()

    V.reset(common_mark)
    hAd = V.get(6); hX = V.get()
    if ptouch:
        a.label('L_helperB')
        a(f'v_and_b32 v{t0}, 3, v{vL}')
        a(f'v_lshlrev_b32 v{t0}, 19, v{t0}')
        a(f'v_add_u32 v{t1}, 0x200000, v{t0}')
        a('s_waitcnt lgkmcnt(0)')
        for p in (pWG, pWU, pWD, pWO): a(f'global_load_dword v{vDUM}, v{t0}, {sr(p,2)} nt')
        a(f'global_load_dword v{vDUM}, v{t1}, {sr(pWO,2)} nt')
        a('s_endpgm')
    a.label('L_helperA')
    if exp == 2: a('s_endpgm')
    sS = Y
    a(f'v_bfe_u32 v{t3}, v{vL}, 4, 1')
    a(f'v_lshrrev_b32 v{t4}, 5, v{vL}')
    a(f'v_lshl_add_u32 v{vR}, v{t3}, 1, v{t4}')
    a(f's_mov_b32 {HI}, 0xffff0000')
    a(f'v_bfe_u32 v{t0}, v{vL}, 2, 2')
    a(f'v_lshlrev_b32 v{t0}, 10, v{t0}')
    a(f'v_lshl_add_u32 v{t0}, v{t4}, 9, v{t0}')
    a(f'v_lshl_add_u32 v{t0}, v{t3}, 6, v{t0}')
    a(f'v_and_b32 v{t1}, 3, v{vL}')
    a(f'v_lshl_add_u32 v{t0}, v{t1}, 4, v{t0}')
    a(f's_lshl_b32 {T0}, {J}, 12')
    a(f's_add_u32 {T0}, {T0}, {E2}')
    a(f'v_add_u32 v{hAd}, {T0}, v{t0}')
    a('s_waitcnt lgkmcnt(0)')
    epoch_load()
    if ptouch:
        a(f'v_and_b32 v{t3}, 7, v{vL}')
        a(f'v_lshlrev_b32 v{t3}, 19, v{t3}')
        a(f'global_load_dword v{vDUM}, v{t3}, {sr(pWO,2)} nt')
        a(f'global_load_dword v{vDUM}, v{vZ}, {sr(pOUT,2)} nt')
        a(f'global_load_dword v{vDUM}, v{vZ}, {sr(pX,2)} nt')
    if touch:
        a(f's_lshl_b32 {T1}, {J}, 4')
        a(f's_add_u32 {T1}, {T1}, {sS}')
        a(f's_mul_i32 {T2}, {T1}, {RS}')
        a(f's_add_u32 {T2}, {T2}, {E3+LOC}')
        a(f'v_lshl_add_u32 v{t3}, v{vL}, 5, {T2}')
        a(f'global_load_dword v{vDUM}, v{t3}, {WS}')
        a(f's_mul_i32 {T2}, {T1}, {MS}')
        a(f's_add_u32 {T2}, {T2}, {E3ML+LOC}')
        a(f'v_lshl_add_u32 v{t3}, v{vL}, 3, {T2}')
        a(f'global_load_dword v{vDUM}, v{t3}, {WS}')
    a('s_waitcnt vmcnt(0)')
    epoch_use()
    poll([ld4(vG + 8 * u + 4 * i, hAd, 256 * u + 128 * i) for u in range(2) for i in range(2)])
    for k in range(4): pkadd(vG + 2 * k, vG + 2 * k, vG + 8 + 2 * k)
    for k in range(4): a(f'v_cvt_pk_bf16_f32 v{vA+k}, v{vG+2*k}, v{vG+2*k+1}')
    a(f'ds_write_b128 v{vL16}, {vr(vA,4)} offset:{L_Q}')
    stamp(2)
    a(f's_cmp_ge_u32 {sS}, 2')
    a('s_waitcnt lgkmcnt(0)')
    a('s_barrier')
    a('s_cbranch_scc1 L_A_done')
    a(f's_lshl_b32 {FI}, {J}, 1')
    a(f's_add_u32 {FI}, {FI}, {sS}')
    a(f's_lshl_b32 {T0}, {FI}, 7')
    a(f'v_mul_u32_u24 v{t0}, {RS}, v{vRHO}')
    a(f'v_lshl_add_u32 v{t0}, v{vC8}, 4, v{t0}')
    a(f'v_add_u32 v{t0}, {T0}, v{t0}')
    a(f'v_lshl_add_u32 v{t1}, v{vC8}, 2, v{vR}')
    a(f'v_add_u32 v{hAd}, {E4}, v{t0}')
    a(f'v_add_u32 v{hAd+1}, {8*RS}, v{hAd}')
    a(f'v_lshl_add_u32 v{t2}, v{t1}, 2, {T0}')
    a(f'v_add_u32 v{hAd+2}, {E6+3072}, v{t2}')
    a(f'v_lshrrev_b32 v{hAd+3}, 1, v{t2}')
    a(f'v_lshlrev_b32 v{hAd+4}, 2, v{t1}')
    a(f'v_mov_b32 v{hX}, 0')
    a(f's_mov_b32 {sr(sM)}, 0x00ff00ff')
    a(f's_mov_b32 {sr(sM+1)}, 0x00ff00ff')
    a('s_barrier')
    a('s_barrier')
    a(f'global_load_short_d16_hi v{hX}, v{hAd+3}, {sr(pX,2)}')
    poll([ld1(vG + 8, hAd + 2, -3072), ld1(vG + 9, hAd + 2, 3072), ld4(vG, hAd), ld4(vG + 4, hAd + 1)])
    pkadd(vG, vG, vG + 4); pkadd(vG + 2, vG + 2, vG + 6)
    tred4([vG])
    dpp_red('v_add_f32', [vG], 'row_ror:8')
    rb(vG, vG)
    a(f'v_mul_f32 v{vG}, v{vG+8}, v{vG}')
    rb(vG, vG)
    a(f'v_add_f32 v{vG}, v{hX}, v{vG}')
    rb(hX, vG)
    stamp(11)
    a('s_barrier')
    for k in range(4): a(f'ds_read_b32 v{vG+k}, v{hAd+4} offset:{L_FIN+128*k}')
    a('s_waitcnt lgkmcnt(0)')
    pkadd(vG, vG, vG + 2)
    a(f'v_add_f32 v{vG}, v{vG}, v{vG+1}')
    rb(vG, vG)
    a(f'v_mul_f32 v{vG}, v{vG+9}, v{vG}')
    rb(vG, vG)
    a(f'v_add_f32 v{vG}, v{hX}, v{vG}')
    a(f'v_cvt_pk_bf16_f32 v{vG}, v{vG}, v{vG}')
    a(f's_mov_b64 exec, {sr(sM,2)}')
    a(f'global_store_short v{hAd+3}, v{vG}, {sr(pOUT,2)}')
    stamp(12)
    a(f's_cmp_lg_u32 {FI}, 0')
    a('s_cbranch_scc1 L_A_done')
    a('s_mov_b64 exec, 1')
    a(f'v_mov_b32 v{t0}, 0')
    a(f'global_store_dword v{t0}, v{vE}, {WS} sc1')
    if dbl:
        a('s_memrealtime s[98:99]')
        a('s_waitcnt lgkmcnt(0)')
        a(f's_sub_u32 {T0}, s98, s96')
        a(f's_mul_i32 {T0}, {T0}, {dbl}')
        a(f's_min_u32 {T0}, {T0}, 20000')
        a.label('L_dbl')
        a('s_memrealtime s[96:97]')
        a('s_waitcnt lgkmcnt(0)')
        a(f's_sub_u32 {T1}, s96, s98')
        a(f's_cmp_lt_u32 {T1}, {T0}')
        a('s_cbranch_scc1 L_dbl')
    a('s_branch L_A_done')

    V.reset(a_mark)
    vAd = V.get(1)
    a.label('L_A0')
    if exp == 1: a('s_endpgm')
    a(f's_cmp_eq_u32 {W}, 4')
    a('s_cbranch_scc1 L_helperA')
    a(f'v_bfe_u32 v{t0}, v{vL}, 2, 2')
    a(f'v_and_b32 v{t3}, 3, v{vL}')
    a(f'v_lshlrev_b32 v{t0}, 8, v{t0}')
    a(f'v_lshl_add_u32 v{t0}, v{vG4}, 6, v{t0}')
    a(f'v_lshl_add_u32 v{vKo}, v{t3}, 4, v{t0}')
    if kvmap == 0:
        a(f'v_add_u32 v{vKo+1}, 8192, v{vKo}')
        a(f'v_add_u32 v{aV2}, 8192, v{vL16}')
        a(f's_lshl_b32 {T0}, {J}, 24')
        a(f's_lshl_b32 {T1}, {Y}, 16')
        a(f's_lshl_b32 {T2}, {W}, 14')
        a(f's_add_u32 {T0}, {T0}, {T1}')
        a(f's_add_u32 {T0}, {T0}, {T2}')
        a(f's_add_u32 {T0}, {T0}, {(65536-4096)*256+4096}')
    else:
        a(f's_mul_i32 {T0}, {J}, {jph << 16}')
        a(f's_lshl_b32 {T1}, {Y}, 12')
        a(f's_lshl_b32 {T2}, {W}, 10')
        a(f's_add_u32 {T0}, {T0}, {T1}')
        a(f's_add_u32 {T0}, {T0}, {T2}')
        a(f's_and_b32 {T0}, {T0}, 0xfffff')
        a(f'v_add_u32 v{vKo}, {T0}, v{vKo}')
        a(f's_add_u32 {T0}, {T0}, {vph << 16}')
        a(f's_and_b32 {T0}, {T0}, 0xfffff')
        a(f'v_add_u32 v{aV2}, {T0}, v{vL16}')
        a(f's_lshl_b32 {T0}, {J}, 24')
        a(f's_add_u32 {T0}, {T0}, {(65536-4096)*256}')
    a('s_waitcnt lgkmcnt(0)')
    stamp(1)
    a(f's_add_u32 {sr(pK)}, {sr(pK)}, {T0}')
    a(f's_addc_u32 {sr(pK+1)}, {sr(pK+1)}, 0')
    epoch_load()
    if adelay >= 1: a('s_waitcnt vmcnt(0)')
    if adelay >= 2:
        a(f'global_load_dword v{vE}, v{vZ}, {WS} offset:0 sc1')
        a(f'global_load_dword v{t3}, v{vZ}, {sr(pOUT,2)} sc1')
        a('s_waitcnt vmcnt(0)')
    for k in range(16):
        if athr and k == athr: a(f's_waitcnt vmcnt({aw})')
        if kvmap == 0: a(f'global_load_dwordx4 {vr(vK+4*k,4)}, v{vKo+k//8}, {sr(pK,2)} offset:{1024*(k%8)-4096} nt')
        else:
            a(f'global_load_dwordx4 {vr(vK+4*k,4)}, v{vKo}, {sr(pK,2)} nt')
            a(f'v_add_u32 v{vKo}, 0x10000, v{vKo}')
            a(f'v_and_b32 v{vKo}, 0xfffff, v{vKo}')
    a(f's_add_u32 {sr(pV)}, {sr(pV)}, {T0}')
    a(f's_addc_u32 {sr(pV+1)}, {sr(pV+1)}, 0')
    for k in range(vsplit):
        if kvmap == 0: a(f'global_load_dwordx4 {vr(vV+4*k,4)}, v{vL16 if k<8 else aV2}, {sr(pV,2)} offset:{1024*(k%8)-4096} nt')
        else:
            a(f'global_load_dwordx4 {vr(vV+4*((k+vph)&15),4)}, v{aV2}, {sr(pV,2)} nt')
            a(f'v_add_u32 v{aV2}, 0x10000, v{aV2}')
            a(f'v_and_b32 v{aV2}, 0xfffff, v{aV2}')

    a(f'v_bfe_u32 v{t3}, v{vL}, 4, 1')
    a(f'v_lshrrev_b32 v{t4}, 5, v{vL}')
    a(f'v_lshl_add_u32 v{vR}, v{t3}, 1, v{t4}')
    common_consts()
    a(f'v_and_b32 v{t0}, 1, v{vL}')
    a(f'v_lshlrev_b32 v{t0}, 4, v{t0}')
    a(f'v_mov_b32 v{t1}, 0xffff')
    a(f'v_lshlrev_b32 v{t0}, v{t0}, v{t1}')
    a(f'v_and_b32 v{t1}, 2, v{vL}')
    a(f'v_cmp_eq_u32 vcc, 0, v{t1}')
    a(f'v_cndmask_b32 v{vN0}, 0, v{t0}, vcc')
    a(f'v_cndmask_b32 v{vN1}, v{t0}, 0, vcc')
    for sq, val in ((sQ1, 0x22222222), (sQ2, 0x44444444), (sQ3, 0x88888888)):
        a(f's_mov_b32 {sr(sq)}, {val:#x}'); a(f's_mov_b32 {sr(sq+1)}, {val:#x}')
    a(f's_mov_b32 {sr(sSC)}, {SCALE:#x}')
    a(f's_mov_b32 {sr(sSC+1)}, {SCALE:#x}')
    a(f's_and_b32 {T0}, {sS}, 1')
    a(f's_lshl_b32 {T0}, {T0}, 1')
    a(f's_lshr_b32 {T1}, {W}, 1')
    a(f's_add_u32 {sr(sM)}, {T0}, {T1}')
    a(f's_and_b32 {sr(sM+1)}, {W}, 1')
    a(f's_lshl_b32 {T0}, {J}, 9')
    a(f's_lshl_b32 {T1}, {sr(sM)}, 7')
    a(f's_add_u32 {T0}, {T0}, {T1}')
    a(f's_lshl_b32 {T1}, {sr(sM+1)}, 2')
    a(f's_add_u32 {T0}, {T0}, {T1}')
    a(f's_lshl_b32 {T0}, {T0}, 10')
    a(f's_lshr_b32 {T1}, {sS}, 1')
    a(f's_lshl_b32 {T1}, {T1}, 7')
    a(f's_add_u32 {T0}, {T0}, {T1}')
    a(f'v_lshlrev_b32 v{t0}, 14, v{vRHO}')
    a(f'v_lshl_add_u32 v{t0}, v{vC8}, 4, v{t0}')
    a(f'v_add_u32 v{vKo}, {T0}, v{t0}')
    a(f'v_add_u32 v{vKo+1}, 8192, v{vKo}')
    aE3, aML, aRw, aE4 = vPF, vPF + 1, vPF + 2, vPF + 3
    aMLw, aMLr, aRr, aE3s, aMLs = vAd, t9, t7, t6, t5
    a(f's_mul_i32 {T0}, {J}, {16*RS}')
    a(f's_lshl_b32 {T1}, {sr(sM)}, 9')
    a(f's_add_u32 {T0}, {T0}, {T1}')
    a(f's_lshl_b32 {T1}, {sr(sM+1)}, 8')
    a(f's_add_u32 {T0}, {T0}, {T1}')
    a(f's_add_u32 {T0}, {T0}, {E3}')
    a(f'v_mul_u32_u24 v{t0}, {RS}, v{vG4}')
    a(f'v_lshl_add_u32 v{t0}, v{vC16}, 4, v{t0}')
    a(f'v_add_u32 v{aE3}, {T0}, v{t0}')
    a(f's_mul_i32 {T0}, {J}, {16*MS}')
    a(f's_lshl_b32 {T1}, {sr(sM)}, 7')
    a(f's_add_u32 {T0}, {T0}, {T1}')
    a(f's_add_u32 {T0}, {T0}, {E3ML+6*MS}')
    a(f'v_mul_u32_u24 v{t0}, {MS}, v{vG4}'); a(f'v_add_u32 v{aML}, {T0}, v{t0}')
    a(f's_lshl_b32 {T1}, {W}, 11')
    a(f'v_add_u32 v{aRw}, {T1}, v{vL16}')
    a(f's_lshl_b32 {T0}, {W}, 3')
    a(f'v_lshl_add_u32 v{aMLw}, v{vL}, 3, {T0}')
    a(f's_lshl_b32 {T1}, {W}, 5')
    a(f'v_and_b32 v{t0}, 3, v{vL}')
    a(f'v_lshl_add_u32 v{aMLr}, v{t0}, 3, {T1}')
    a(f'v_and_b32 v{t0}, 31, v{vL}')
    a(f'v_lshlrev_b32 v{t0}, 3, v{t0}')
    a(f'v_lshl_add_u32 v{t0}, v{t4}, 10, v{t0}')
    a(f's_lshl_b32 {T1}, {W}, 8')
    a(f'v_add_u32 v{aRr}, {T1}, v{t0}')
    a(f's_lshl_b32 {T1}, {J}, 4')
    a(f's_add_u32 {T1}, {T1}, {sS}')
    a(f's_mul_i32 {T2}, {T1}, 5')
    a(f's_add_u32 {T2}, {T2}, {W}')
    a(f's_lshl_b32 {T2}, {T2}, 7')
    a(f's_add_u32 {T2}, {T2}, {E3ML}')
    a(f'v_mov_b32 v{aMLs}, {T2}')
    a(f's_mul_i32 {T1}, {T1}, {RS}')
    a(f's_lshl_b32 {T0}, {W}, 9')
    a(f's_add_u32 {T1}, {T1}, {T0}')
    a(f's_add_u32 {T1}, {T1}, {E3}')
    a(f'v_lshl_add_u32 v{aE3s}, v{vL}, 3, {T1}')
    a(f's_lshl_b32 {T0}, {J}, 1')
    a(f's_and_b32 {T1}, {sS}, 1')
    a(f's_add_u32 {T0}, {T0}, {T1}')
    a(f's_mul_i32 {T0}, {T0}, {RS}')
    a(f's_lshr_b32 {T1}, {sS}, 1')
    a(f's_lshl_b32 {T1}, {T1}, 8')
    a(f's_add_u32 {T0}, {T0}, {T1}')
    a(f's_add_u32 {T0}, {T0}, {E4}')
    a(f'v_lshl_add_u32 v{t0}, v{vC16}, 2, v{vR}')
    a(f'v_lshl_add_u32 v{aE4}, v{t0}, 2, {T0}')
    a(f's_waitcnt vmcnt({16+vsplit})')
    epoch_use()
    a(f's_add_u32 {sr(sAB)}, {sr(pWS)}, {LOC}')
    a(f's_addc_u32 {sr(sAB+1)}, {sr(pWS+1)}, 0')
    stamp(2)
    if vst:
        a('s_waitcnt vmcnt(0)')
        stamp(13)
    a('s_barrier')
    stamp(3)
    a(f'ds_read_b128 {vr(vQ,4)}, v{vL16} offset:{L_Q}')
    for k in range(vsplit, 16):
        a(f'global_load_dwordx4 {vr(vV+4*k,4)}, v{vL16 if k<8 else aV2}, {sr(pV,2)} offset:{1024*(k%8)-4096} nt')
    a('s_waitcnt vmcnt(16) lgkmcnt(0)')
    stamp(4)
    zS = vD
    def smfma(k): a(f'v_mfma_f32_16x16x32_bf16 {vr(vS+4*(k%4),4)}, {vr(vK+4*k,4)}, {vr(vQ,4)}, 0')
    def sdpp(k):
        d = vS + 4 * (k % 4); o = vG + k
        a(f'v_mov_b32_dpp v{o}, v{d} quad_perm:[0,0,0,0] {DPP}')
        for r in range(1, 4): a(f'v_add_f32_dpp v{o}, v{d+r}, v{o} quad_perm:[{r},{r},{r},{r}] {DPP}')
    LEAD = 3
    for k in range(LEAD): smfma(k)
    for k in range(16):
        if k + LEAD < 16: smfma(k + LEAD)
        sdpp(k)
        if wopos == 0 and k % 2 == 0: a(f'global_load_dwordx4 {vr(vWO+2*k,4)}, v{vKo+k//8}, {sr(pWO,2)} offset:{1024*((k//2)%4)} nt')
        if k % 4 == 3:
            z = zS + k // 4; b = vG + k - 3
            a(f'v_cndmask_b32 v{z}, v{b}, v{b+1}, {sr(sQ1,2)}')
            a(f'v_cndmask_b32 v{z}, v{z}, v{b+2}, {sr(sQ2,2)}')
            a(f'v_cndmask_b32 v{z}, v{z}, v{b+3}, {sr(sQ3,2)}')
    zM, zL = vG + 28, vG + 29
    zP = vG + 8
    a(f'v_cvt_pk_bf16_f32 v{t0}, v{zS}, v{zS+1}')
    a(f'v_cvt_pk_bf16_f32 v{t1}, v{zS+2}, v{zS+3}')
    a(f'v_lshlrev_b32 v{vG}, 16, v{t0}')
    a(f'v_and_b32 v{vG+1}, {HI}, v{t0}')
    a(f'v_lshlrev_b32 v{vG+2}, 16, v{t1}')
    a(f'v_and_b32 v{vG+3}, {HI}, v{t1}')
    a(f'v_pk_mul_f32 {vr(vG,2)}, {vr(vG,2)}, {sr(sSC,2)}')
    a(f'v_pk_mul_f32 {vr(vG+2,2)}, {vr(vG+2,2)}, {sr(sSC,2)}')
    a(f'v_cvt_pk_bf16_f32 v{t0}, v{vG}, v{vG+1}')
    a(f'v_cvt_pk_bf16_f32 v{t1}, v{vG+2}, v{vG+3}')
    a(f'v_lshlrev_b32 v{vG}, 16, v{t0}')
    a(f'v_and_b32 v{vG+1}, {HI}, v{t0}')
    a(f'v_lshlrev_b32 v{vG+2}, 16, v{t1}')
    a(f'v_and_b32 v{vG+3}, {HI}, v{t1}')
    a(f'v_max3_f32 v{zM}, v{vG}, v{vG+1}, v{vG+2}')
    a(f'v_max_f32 v{zM}, v{zM}, v{vG+3}')
    dpp_red('v_max_f32', [zM], Q1); dpp_red('v_max_f32', [zM], Q2)
    swap_red('v_max_f32', [zM], 16, [t1]); swap_red('v_max_f32', [zM], 32, [t1])
    for k in range(4): a(f'v_sub_f32 v{vG+k}, v{vG+k}, v{zM}')
    for k in range(4): a(f'v_mul_f32 v{vG+k}, {sr(sLOG2E)}, v{vG+k}')
    for k in range(4): a(f'v_exp_f32 v{vG+k}, v{vG+k}')
    for k in range(4): a(f'v_cvt_pk_bf16_f32 v{zP+k}, v{vG+k}, v{vG+k}')
    pkadd(vG, vG, vG + 2)
    a(f'v_add_f32 v{zL}, v{vG}, v{vG+1}')
    stamp(5)
    lsteps = [lambda: dpp_red('v_add_f32', [zL], Q1), lambda: dpp_red('v_add_f32', [zL], Q2),
              lambda: a(f'v_mov_b32 v{t1}, v{zL}'),
              lambda: (a(f'v_permlane16_swap_b32 v{zL}, v{t1}'), a(f'v_add_f32 v{zL}, v{zL}, v{t1}')),
              lambda: a(f'v_mov_b32 v{t1}, v{zL}'),
              lambda: (a(f'v_permlane32_swap_b32 v{zL}, v{t1}'), a(f'v_add_f32 v{zL}, v{zL}, v{t1}'))]
    for p0 in range(8):
        p = (p0 + (vph // 2 if kvmap else 0)) & 7
        ab = vA + 4 * (p0 % 4)
        for k in range(2):
            tt = 2 * p + k; src = zP + tt // 4; q = tt & 3
            a(f'v_and_b32_dpp v{ab+2*k}, v{src}, v{vN0} quad_perm:[{q},{q},{q},{q}] {DPP}')
            a(f'v_and_b32_dpp v{ab+2*k+1}, v{src}, v{vN1} quad_perm:[{q},{q},{q},{q}] {DPP}')
        a(f's_waitcnt vmcnt({14-p0 if wopos else 22-2*p0})')
        if p0 == 7: stamp(14)
        a(f'v_swap_b32 v{vV+8*p+2}, v{vV+8*p+4}')
        a(f'v_swap_b32 v{vV+8*p+3}, v{vV+8*p+5}')
        if p0 < 6: lsteps[p0]()
        a(f'v_mfma_f32_16x16x32_bf16 {vr(vO,4)}, {vr(ab,4)}, {vr(vV+8*p,4)}, ' + ('0' if p0 == 0 else vr(vO, 4)))
        a(f'v_mfma_f32_16x16x32_bf16 {vr(vO+4,4)}, {vr(ab,4)}, {vr(vV+8*p+4,4)}, ' + ('0' if p0 == 0 else vr(vO + 4, 4)))
        if wopos: a(f'global_load_dwordx4 {vr(vWO+4*p0,4)}, v{vKo+p0//4}, {sr(pWO,2)} offset:{1024*(p0%4)} nt')
    stamp(6)
    a('s_mov_b64 exec, 0x1111')
    a(f'ds_write_b64 v{aMLw}, {vr(zM,2)} offset:{L_ML}')
    a('s_mov_b64 exec, -1')
    a(f'ds_write_b128 v{aRw}, {vr(vO,4)} offset:{L_BIG}')
    a(f'ds_write_b128 v{aRw}, {vr(vO+4,4)} offset:{L_BIG+1024}')
    a('s_waitcnt lgkmcnt(0)')
    if fine == 1: stamp(1)
    a('s_barrier')
    if fine == 1: stamp(2)
    a(f'ds_read_b64 {vr(zM,2)}, v{aMLr} offset:{L_ML}')
    for k in range(4): a(f'ds_read_b64 {vr(vG+2*k,2)}, v{aRr} offset:{L_BIG+2048*k}')
    a('s_waitcnt lgkmcnt(4)')
    zA = vK + 20; zO = vK + 16
    a(f'v_max_f32_dpp v{zA}, v{zM}, v{zM} {Q1} {DPP}')
    dpp_red('v_max_f32', [zA], Q2)
    a(f'v_sub_f32 v{zM}, v{zM}, v{zA}')
    a(f'v_mul_f32 v{zM}, {sr(sLOG2E)}, v{zM}')
    a(f'v_exp_f32 v{zM}, v{zM}')
    a(f'v_mul_f32 v{zA+1}, v{zM}, v{zL}')
    a('s_waitcnt lgkmcnt(0)')
    for k in range(4):
        op = 'v_mul_f32_dpp' if k == 0 else 'v_fmac_f32_dpp'
        a(f'{op} v{zO}, v{zM}, v{vG+2*k} quad_perm:[{k},{k},{k},{k}] {DPP}')
        a(f'{op} v{zO+1}, v{zM}, v{vG+2*k+1} quad_perm:[{k},{k},{k},{k}] {DPP}')
        if k == 0: dpp_red('v_add_f32', [zA + 1], Q1)
        if k == 2: dpp_red('v_add_f32', [zA + 1], Q2)
    tag(zO); tag(zO + 1)
    if fine == 1: stamp(13)
    a(f'global_store_dwordx2 v{aE3s}, {vr(zO,2)}, {sr(sAB,2)}')
    tag(zA); tag(zA + 1)
    a(f'v_mov_b32 v{zA+2}, v{zA}')
    a(f'v_mov_b32 v{zA+3}, v{zA+1}')
    a('s_mov_b64 exec, 1')
    a(f'global_store_dwordx4 v{aMLs}, {vr(zA,4)}, {sr(sAB,2)}')
    a('s_mov_b64 exec, -1')
    def st3():
        a(f'global_store_dwordx2 v{aE3s}, {vr(zO,2)}, {WS} sc1')
        a('s_mov_b64 exec, 1')
        a(f'global_store_dwordx4 v{aMLs}, {vr(zA,4)}, {WS} sc1')
        a('s_mov_b64 exec, -1')
    stamp(7)
    a(f'v_add_u32 v{t0}, {4*RS}, v{aE3}')
    a(f'v_add_u32 v{t1}, {8*RS}, v{aE3}')
    a(f'v_add_u32 v{t2}, {12*RS}, v{aE3}')
    if diag and fine == 3:
        a('s_waitcnt vmcnt(0)')
        stamp(8)
    ml = vK
    l3 = [ld4(ml + 4 * k, aML, 4 * MS * k - 6 * MS) for k in range(4)] + [ld4(vG + 4 * k, [aE3, t0, t1, t2][k]) for k in range(4)]
    l3 = [(x.replace(WS, sr(sAB, 2)), r) for x, r in l3]
    poll(l3, alt=True, late_st=st3, cnt_slot=(13 if fine == 4 else None), first_slot=(8 if fine == 4 else None))
    stamp(9)
    a(f'v_max3_f32 v{zM}, v{ml}, v{ml+4}, v{ml+8}')
    a(f'v_max_f32 v{zM}, v{zM}, v{ml+12}')
    swap_red('v_max_f32', [zM], 16, [t1]); swap_red('v_max_f32', [zM], 32, [t1])
    for k in range(4): a(f'v_sub_f32 v{ml+4*k}, v{ml+4*k}, v{zM}')
    for k in range(4): a(f'v_mul_f32 v{ml+4*k}, {sr(sLOG2E)}, v{ml+4*k}')
    for k in range(4): a(f'v_exp_f32 v{ml+4*k}, v{ml+4*k}')
    a(f'v_mul_f32 v{zL}, v{ml}, v{ml+1}')
    sel = 'op_sel:[0,0,0] op_sel_hi:[1,0,1]'
    a(f'v_pk_mul_f32 {vr(vG,2)}, {vr(vG,2)}, {vr(ml,2)} op_sel:[0,0] op_sel_hi:[1,0]')
    a(f'v_pk_mul_f32 {vr(vG+2,2)}, {vr(vG+2,2)}, {vr(ml,2)} op_sel:[0,0] op_sel_hi:[1,0]')
    for k in range(1, 4):
        a(f'v_fmac_f32 v{zL}, v{ml+4*k}, v{ml+4*k+1}')
        a(f'v_pk_fma_f32 {vr(vG,2)}, {vr(vG+4*k,2)}, {vr(ml+4*k,2)}, {vr(vG,2)} {sel}')
        a(f'v_pk_fma_f32 {vr(vG+2,2)}, {vr(vG+4*k+2,2)}, {vr(ml+4*k,2)}, {vr(vG+2,2)} {sel}')
    a(f'v_mov_b32 v{t1}, v{zL}')
    a(f'v_permlane32_swap_b32 v{vG}, v{vG+1}')
    a(f'v_permlane32_swap_b32 v{vG+2}, v{vG+3}')
    a(f'v_permlane16_swap_b32 v{zL}, v{t1}')
    a(f'v_add_f32 v{vG}, v{vG}, v{vG+1}'); a(f'v_add_f32 v{vG+2}, v{vG+2}, v{vG+3}')
    a(f'v_add_f32 v{zL}, v{zL}, v{t1}')
    a(f'v_mov_b32 v{t1}, v{zL}')
    a(f'v_permlane16_swap_b32 v{vG}, v{vG+2}')
    a(f'v_permlane32_swap_b32 v{zL}, v{t1}')
    a(f'v_add_f32 v{vG}, v{vG}, v{vG+2}')
    a(f'v_add_f32 v{zL}, v{zL}, v{t1}')
    a(f'v_rcp_f32 v{zL}, v{zL}')
    a(f'v_mul_f32 v{vG}, v{vG}, v{zL}')
    a(f'v_cvt_pk_bf16_f32 v{vG}, v{vG}, v{vG}')
    a(f'ds_write_b32 v{vXW}, v{vG}')
    a(f'ds_read_b128 {vr(vG+8,4)}, v{vXR}')
    a(f'ds_read_b128 {vr(vG+12,4)}, v{vXR} offset:16')
    a('s_waitcnt lgkmcnt(0)')
    diag_gemv([vWO + 4 * k for k in range(8)], [vG + 8 + k for k in range(8)])
    tile_reduce(L_TR1, aE4)
    stamp(10)
    st3()
    a(f's_cmp_ge_u32 {sS}, 2')
    a('s_cbranch_scc1 L_A_done')
    a(f's_lshl_b32 {FI}, {J}, 1')
    a(f's_add_u32 {FI}, {FI}, {sS}')
    a(f's_lshl_b32 {T0}, {FI}, 7')
    a(f's_mul_i32 {T1}, {W}, {32*RS}')
    a(f's_add_u32 {T0}, {T0}, {T1}')
    a(f's_add_u32 {T0}, {T0}, {E5}')
    a(f'v_mul_u32_u24 v{t0}, {RS}, v{vRHO}')
    a(f'v_lshl_add_u32 v{t0}, v{vC8}, 4, v{t0}')
    a(f'v_add_u32 v{t0}, {T0}, v{t0}')
    for k in range(1, 4): a(f'v_add_u32 v{t[k]}, {8*RS*k}, v{t0}')
    a(f'v_lshl_add_u32 v{t4}, v{vC8}, 2, v{vR}')
    a(f's_lshl_b32 {T1}, {W}, 7')
    a(f'v_lshl_add_u32 v{t4}, v{t4}, 2, {T1}')
    def post5(k):
        if k == 1: pkadd(vG, vG, vG + 4); pkadd(vG + 2, vG + 2, vG + 6)
        if k == 2: pkadd(vG, vG, vG + 8); pkadd(vG + 2, vG + 2, vG + 10)
        if k == 3: pkadd(vG, vG, vG + 12); pkadd(vG + 2, vG + 2, vG + 14)
    poll([ld4(vG + 4 * k, t[k]) for k in range(4)], post5)
    stamp(11)
    tred4([vG])
    dpp_red('v_add_f32', [vG], 'row_ror:8')
    a(f'ds_write_b32 v{t4}, v{vG} offset:{L_FIN}')
    a('s_waitcnt lgkmcnt(0)')
    a('s_barrier')
    stamp(12)
    a.label('L_A_done')
    finish()
    a.label('L_end')
    a('s_endpgm')

    nv = (V.hi + 7) // 8 * 8
    head = [f'; @launch grid=(256,1,1) block=(320,1,1) lds={LDS_BYTES}',
            '.amdgcn_target "amdgcn-amd-amdhsa--gfx950"', '.text', f'.globl {KNAME}', '.p2align 8', f'.type {KNAME},@function']
    tail = [f'.fill ({code_kb}*1024 - (. - {KNAME}))/4, 4, 0xbf810000',
            '.section .rodata,"a"', '.p2align 6', f'.amdhsa_kernel {KNAME}',
            f'  .amdhsa_next_free_vgpr {nv}', '  .amdhsa_next_free_sgpr 100', f'  .amdhsa_accum_offset {nv}',
            '  .amdhsa_group_segment_fixed_size 0', '  .amdhsa_kernarg_size 112', '  .amdhsa_user_sgpr_count 2',
            '  .amdhsa_user_sgpr_kernarg_segment_ptr 1', '  .amdhsa_system_sgpr_workgroup_id_x 1',
            '  .amdhsa_float_denorm_mode_32 3', '.end_amdhsa_kernel']
    return '\n'.join(head) + '\n' + a.text() + '\n'.join(tail) + '\n', nv, a.nnop

if __name__ == '__main__':
    out = sys.argv[1]
    kw = {}
    for x in sys.argv[2:]:
        k, v = x.split('='); kw[k] = int(v)
    kw.setdefault('code_kb', 15 if kw.get('diag') else 13)
    s, nv, nn = gen(**kw)
    open(out, 'w').write(s)
    print('vgprs', nv, 'nops', nn)
```
